```python
import torch

def _softmax(x, axis=-1):
    return torch.softmax(x, dim=axis)
def _gelu(x):
    return torch.nn.functional.gelu(x, approximate="tanh")
def _silu(x):
    return torch.nn.functional.silu(x)
def _sigmoid(x):
    return torch.sigmoid(x)
def _layernorm(x, axis=-1, eps=1e-5):
    m = x.mean(dim=axis, keepdim=True)
    v = x.var(dim=axis, keepdim=True, unbiased=False)
    return (x - m) / torch.sqrt(v + eps)
def _scatter_add(tgt, idx, src, axis=0):
    return tgt.clone().index_add_(axis, idx, src)
def _segment_sum(src, seg, n):
    out = torch.zeros((n,) + src.shape[1:], dtype=src.dtype)
    return out.index_add_(0, seg, src)
def _pad(x, pw):
    flat = tuple(v for pair in reversed(pw) for v in pair)
    return torch.nn.functional.pad(x, flat)

kernel_name = 'recurrent_scan__mha_block_cached__moe_arch_mod__decode'

def setup_inputs():

    _w = (lambda a: (lambda t: t.to(torch.bfloat16) if t.is_floating_point() else t)(torch.as_tensor(a)))
    def _A_setup():
        B, Sq, D = 2, 1, 640
        H, Sk, Dh = 32, 8192, 192
        return {
            "x": _w((lambda *s: torch.randn(*s, dtype=torch.bfloat16) * 0.05)(B, Sq, D)),
            "k_cache": _w((lambda *s: torch.randn(*s, dtype=torch.bfloat16) * 1.6)(B, H, Sk, Dh)),
            "v_cache": _w((lambda *s: torch.randn(*s, dtype=torch.bfloat16) * 0.2)(B, H, Sk, Dh)),
            "wq": _w((lambda *s: torch.randn(*s, dtype=torch.bfloat16) * 1.6)(D, H * Dh) * (D ** -0.5)),
            "wo": _w((lambda *s: torch.randn(*s, dtype=torch.bfloat16) * 0.2)(H * Dh, D) * ((H * Dh) ** -0.5)),
        }
    _A_in = _A_setup()

    def _B_setup():
        B, S, D, F, C = 2, 1, 640, 1536, 1
        return {
            "x": _w((lambda *s: torch.randn(*s, dtype=torch.bfloat16) * 0.05)(B, S, D)),
            "w_r": _w((lambda *s: torch.randn(*s, dtype=torch.bfloat16) * 0.1)(D)),
            "w_gate": _w((lambda *s: torch.randn(*s, dtype=torch.bfloat16) * 0.1)(D, F)),
            "w_up": _w((lambda *s: torch.randn(*s, dtype=torch.bfloat16) * 0.1)(D, F)),
            "w_down": _w((lambda *s: torch.randn(*s, dtype=torch.bfloat16) * 0.1)(F, D)),
        }
    _B_in = _B_setup()

    return {
        "A_x": _A_in["x"],
        "A_k_cache": _A_in["k_cache"],
        "A_v_cache": _A_in["v_cache"],
        "A_wq": _A_in["wq"],
        "A_wo": _A_in["wo"],
        "B_x": _B_in["x"],
        "B_w_r": _B_in["w_r"],
        "B_w_gate": _B_in["w_gate"],
        "B_w_up": _B_in["w_up"],
        "B_w_down": _B_in["w_down"],
    }

def reference(A_x, A_k_cache, A_v_cache, A_wq, A_wo, B_x, B_w_r, B_w_gate, B_w_up, B_w_down):
    def _A_ref(x, k_cache, v_cache, wq, wo):
        B, Sq, D = x.shape
        H, Dh = 32, 192
        q = (lambda x, *d: x.permute(*d))((x @ wq).reshape(B, Sq, H, Dh), 0, 2, 1, 3)
        scores = torch.einsum("bhqd,bhkd->bhqk", q, k_cache) * (Dh ** -0.5)
        p = _softmax(scores, axis=-1)
        o = torch.einsum("bhqk,bhkd->bhqd", p, v_cache)
        return (lambda x, *d: x.permute(*d))(o, 0, 2, 1, 3).reshape(B, Sq, H * Dh) @ wo

    def _B_ref(x, w_r, w_gate, w_up, w_down):
        B, S, D = x.shape
        C = 1
        r = x @ w_r
        idx = torch.argsort(-r, axis=-1)[:, :C]
        idx_e = (lambda x, n, axis: torch.repeat_interleave(x, n, dim=axis))(idx.reshape(B, C, 1), D, axis=2)
        x_sel = (lambda x, i, axis: torch.take_along_dim(x, i, dim=axis))(x, idx_e, axis=1)
        g = _silu(x_sel @ w_gate)
        u = x_sel @ w_up
        y = (g * u) @ w_down
        r_sel = _sigmoid((lambda x, i, axis: torch.take_along_dim(x, i, dim=axis))(r, idx, axis=1))
        y = y * r_sel.reshape(B, C, 1)
        b_off = (torch.arange(B) * S).reshape(B, 1)
        flat_idx = (idx + b_off).reshape(B * C)
        zero = (x * 0.0).reshape(B * S, D)
        upd = _scatter_add(zero, flat_idx, y.reshape(B * C, D), axis=0)
        return x + upd.reshape(B, S, D)

    x = A_x
    xn = _layernorm(x, axis=-1)
    s = _A_ref(xn, A_k_cache, A_v_cache, A_wq, A_wo)
    g = _silu(_B_ref(xn, B_w_r, B_w_gate, B_w_up, B_w_down))
    return x + s * g
```

```python
import re

TRANS = ("v_exp_f32", "v_log_f32", "v_rcp_f32", "v_rsq_f32", "v_sqrt_f32", "v_sin_f32", "v_cos_f32")

def regs_of(op):
    op = op.strip()
    neg = op.lstrip("-")
    m = re.fullmatch(r"abs\((.*)\)", neg) or re.fullmatch(r"\|(.*)\|", neg)
    if m: neg = m.group(1)
    op = neg
    m = re.fullmatch(r"([vs])(\d+)", op)
    if m: return {(m.group(1), int(m.group(2)))}
    m = re.fullmatch(r"([vs])\[(\d+):(\d+)\]", op)
    if m: return {(m.group(1), i) for i in range(int(m.group(2)), int(m.group(3)) + 1)}
    if op in ("vcc", "vcc_lo", "vcc_hi"): return {("vcc", 0)}
    if op in ("exec", "exec_lo", "exec_hi"): return {("exec", 0)}
    if op == "m0": return {("m0", 0)}
    return set()

class Ins:
    def __init__(self, text):
        self.text = text
        t = text.split(";")[0].strip()
        parts = t.split(None, 1)
        self.op = parts[0]
        rest = parts[1] if len(parts) > 1 else ""
        ops, depth, cur = [], 0, ""
        for ch in rest:
            if ch in "[(": depth += 1
            if ch in "])": depth -= 1
            if ch == "," and depth == 0:
                ops.append(cur.strip()); cur = ""
            else: cur += ch
        if cur.strip(): ops.append(cur.strip())
        self.mods = ""
        if ops:
            sp = ops[-1].split(None, 1)
            if len(sp) > 1:
                ops[-1] = sp[0]; self.mods = sp[1]
        self.ops = ops
        op = self.op
        self.valu = op.startswith("v_")
        self.salu = op.startswith("s_")
        self.vmem = op.startswith(("buffer_", "global_", "flat_"))
        self.ds = op.startswith("ds_")
        self.dpp = self.valu and ("_dpp" in op or any(k in self.mods for k in ("quad_perm", "row_", "wave_")))
        self.base = re.sub(r"_(e32|e64|dpp|sdwa)$", "", op)
        self.trans = self.base in TRANS
        self.dot = self.base.startswith("v_dot")
        self.perml = self.base.startswith("v_permlane")
        self.rdl = self.base in ("v_readlane_b32", "v_readfirstlane_b32")
        W, R = set(), set()
        if self.valu:
            if self.perml:
                W |= regs_of(ops[0]) | regs_of(ops[1]); R |= W
            elif self.base.startswith("v_cmp"):
                W |= regs_of(ops[0])
                for o in ops[1:]: R |= regs_of(o)
            elif self.base in ("v_add_co_u32", "v_sub_co_u32", "v_addc_co_u32", "v_subb_co_u32", "v_subrev_co_u32", "v_div_scale_f32", "v_mad_u64_u32"):
                W |= regs_of(ops[0]) | regs_of(ops[1])
                for o in ops[2:]: R |= regs_of(o)
            else:
                W |= regs_of(ops[0])
                for o in ops[1:]: R |= regs_of(o)
                if self.base in ("v_fmac_f32", "v_dot2c_f32_bf16", "v_writelane_b32") or self.dpp:
                    R |= regs_of(ops[0])
                if self.base in ("v_div_fmas_f32",): R |= {("vcc", 0)}
        elif self.vmem or self.ds:
            isload = ("load" in op) or ("read" in op) or ("_rtn" in op) or ("bpermute" in op) or ("atomic" in op and "sc0" in self.mods)
            start = 0
            if isload and "lds" not in self.mods.split():
                W |= regs_of(ops[0]); start = 1
                if "d16" in op: R |= W
            for o in ops[start:]: R |= regs_of(o)
        elif self.salu:
            if ops and not op.startswith(("s_cmp", "s_cbranch", "s_branch", "s_waitcnt", "s_nop", "s_sleep", "s_setprio", "s_barrier", "s_endpgm", "s_bitcmp")):
                W |= regs_of(ops[0])
                for o in ops[1:]: R |= regs_of(o)
            else:
                for o in ops: R |= regs_of(o)
        self.W, self.R = W, R
        self.widestore = self.vmem and "store" in op and ("x3" in op or "x4" in op)
        if self.widestore:
            self.sdata = regs_of(ops[0]) if op.startswith("buffer_") else regs_of(ops[1])
        self.states = 1
        if op == "s_nop": self.states = int(ops[0], 0) + 1

def need(prev, cur):
    n = 0
    if prev.valu:
        wv = {r for r in prev.W if r[0] == "v"}
        ws = {r for r in prev.W if r[0] in ("s", "vcc")}
        if wv & cur.R:
            if cur.dpp or cur.perml: n = max(n, 2)
            if cur.rdl: n = max(n, 1)
            if prev.trans and not cur.trans: n = max(n, 1)
        if prev.dot and (wv & (cur.R | cur.W)):
            same_c = cur.base == prev.base and not (wv & set().union(*[regs_of(o) for o in cur.ops[1:3]]))
            if not same_c: n = max(n, 3)
        if ws & cur.R:
            if cur.valu:
                n = max(n, 2)
                if cur.base in ("v_readlane_b32", "v_writelane_b32") and (ws & regs_of(cur.ops[2])): n = max(n, 4)
                if cur.base == "v_div_fmas_f32": n = max(n, 4)
            if cur.vmem: n = max(n, 5)
            if cur.salu: n = max(n, 1)
    if prev.widestore and (prev.sdata & cur.W):
        n = max(n, 2)
    return n

class Asm:
    def __init__(self):
        self.lines = []
        self.hist = []
    def raw(self, text):
        self.lines.append(text)
    def label(self, name, pad=True):
        self.lines.append(f"{name}:")
        self.hist = []
        if pad:
            self.lines.append("    s_nop 4")
    def __call__(self, text):
        for t in text.strip().split("\n"):
            t = t.strip()
            if not t or t.startswith(";"):
                if t: self.lines.append("    " + t)
                continue
            ins = Ins(t)
            dist = 0
            req = 0
            for p in reversed(self.hist[-8:]):
                r = need(p, ins) - dist
                req = max(req, r)
                dist += p.states
                if dist >= 6: break
            if req > 0:
                nop = Ins(f"s_nop {req-1}")
                self.lines.append(f"    s_nop {req-1}")
                self.hist.append(nop)
            self.lines.append("    " + t)
            self.hist.append(ins)
    def text(self):
        return "\n".join(self.lines) + "\n"
```

```python
import sys
from asmlib import Asm
KNAME = "recurrent_scan__mha_block_cached__moe_arch_mod__decode_kernel"
HEADER = open("recurrent_scan__mha_block_cached__moe_arch_mod__decode.s.ref").read().split("; Override launch")[0]

WS_R, WS_ML, WS_OP, WS_Y, WS_F, WS_END = 0x0, 0x100000, 0x110000, 0x200000, 0x280000, 0x300000
OOB = 0x40000000
L_PART, L_Q, L_O, L_CNT, L_LN, L_END = 0, 9216, 9984, 18176, 18240, 18272
LOG2E = 0x3fb8aa3b
SCALE = 0x3d93cd3a

def gen(D=16, ts=False, kvflags=" nt", GATE_EARLY=2, CATCH=3, PRE=0, BAR_AT=11, WF=None):
    a = Asm()
    A = a
    a.raw(HEADER.rstrip("\n"))
    a.raw(f"; @launch grid=(256,1,1) block=(512,1,1) lds={L_END}")
    a.raw('.amdgcn_target "amdgcn-amd-amdhsa--gfx950"')
    a.raw(".text")
    a.raw(f".globl {KNAME}")
    a.raw(".p2align 8")
    a.raw(f".type {KNAME},@function")
    a.raw(f"{KNAME}:")
    RB = 256 - 12 * D
    W = WF(0)
    assert RB >= 64
    def lreg(j): return RB + 4 * (j % (3 * D))
    def stamp_at(k):
        if ts:
            A(f"s_memrealtime s[{84+2*k}:{85+2*k}]")
    def spin(label):
        a.label(label)
        A("s_sub_u32 s75, s75, 1")
        A("s_cbranch_scc1 L_end")
    def red32(r, t, op="v_add_f32"):
        A(f"""
        v_mov_b32 v{t}, v{r}
        v_permlane16_swap_b32 v{r}, v{t}
        {op} v{r}, v{r}, v{t}
        {op}_dpp v{r}, v{r}, v{r} row_ror:8 row_mask:0xf bank_mask:0xf
        {op}_dpp v{r}, v{r}, v{r} row_ror:4 row_mask:0xf bank_mask:0xf
        {op}_dpp v{r}, v{r}, v{r} row_ror:2 row_mask:0xf bank_mask:0xf
        {op}_dpp v{r}, v{r}, v{r} row_ror:1 row_mask:0xf bank_mask:0xf
        """)
    def red64(r, t, op="v_add_f32"):
        A(f"""
        v_mov_b32 v{t}, v{r}
        v_permlane32_swap_b32 v{r}, v{t}
        {op} v{r}, v{r}, v{t}
        """)
        red32(r, t, op)
    def rbf(d, s):
        A(f"v_cvt_pk_bf16_f32 v{d}, v{s}, v{s}")
        A(f"v_and_b32 v{d}, 0xffff0000, v{d}")
    def oct_red8(r):
        for k in range(4): A(f"v_permlane32_swap_b32 v{r+k}, v{r+4+k}")
        for k in range(4): A(f"v_add_f32 v{r+k}, v{r+k}, v{r+4+k}")
        for k in range(2): A(f"v_permlane16_swap_b32 v{r+k}, v{r+2+k}")
        for k in range(2): A(f"v_add_f32 v{r+k}, v{r+k}, v{r+2+k}")
        A(f"v_add_f32_dpp v{r+2}, v{r}, v{r} row_ror:8 row_mask:0xf bank_mask:0x3")
        A(f"v_add_f32_dpp v{r+3}, v{r+1}, v{r+1} row_ror:8 row_mask:0xf bank_mask:0xc")
        A(f"v_cndmask_b32 v{r}, v{r+2}, v{r+3}, s[12:13]")
    def obcast(d, s, i):
        A(f"v_mov_b32_dpp v{d}, v{s} row_newbcast:{i} row_mask:0xf bank_mask:0x3")
        A(f"v_mov_b32_dpp v{d}, v{s} row_newbcast:{8+i} row_mask:0xf bank_mask:0xc")
    def emit_load(j):
        ten, g, t = j // 96, (j % 96) // 3, j % 3
        srd = "s[36:39]" if ten == 0 else "s[40:43]"
        if t == 0 and g % 2 == 0:
            A(f"s_mov_b32 s76, {g*3072}")
        r = lreg(j)
        A(f"buffer_load_dwordx4 v[{r}:{r+3}], v1, {srd}, s76 offen offset:{(g%2)*3072 + t*128}{kvflags}")

    A("s_cmp_ge_u32 s2, 256")
    A("s_cbranch_scc1 L_end")
    A("s_load_dwordx16 s[8:23], s[0:1], 0")
    A("s_load_dwordx8 s[24:31], s[0:1], 64")
    A("s_load_dwordx2 s[32:33], s[0:1], 96")
    stamp_at(0)
    A(f"""
    v_lshrrev_b32 v2, 6, v0
    v_and_b32 v0, 63, v0
    v_readfirstlane_b32 s3, v2
    s_lshr_b32 s4, s2, 3
    s_and_b32 s5, s2, 7
    v_lshrrev_b32 v2, 3, v0
    v_mul_u32_u24 v2, 384, v2
    v_and_b32 v3, 7, v0
    v_lshl_add_u32 v1, v3, 4, v2
    s_lshr_b32 s6, s3, 2
    s_and_b32 s7, s3, 3
    s_lshl_b32 s68, s6, 5
    s_add_u32 s68, s68, s4
    s_lshl_b32 s68, s68, 5
    s_lshl_b32 s69, s5, 2
    s_add_u32 s68, s68, s69
    s_add_u32 s68, s68, s7
    s_mul_i32 s68, s68, 98304
    s_mov_b32 s38, 98304
    s_mov_b32 s39, 0x20000
    s_lshl_b32 s72, s4, 1
    s_add_u32 s72, s72, s6
    s_lshl_b32 s72, s72, 8
    s_add_u32 s72, s72, {WS_ML}
    s_mov_b32 s75, 0x40000
    s_mov_b32 s46, {WS_END}
    s_mov_b32 s47, 0x20000
    s_movk_i32 s50, 2560
    s_mov_b32 s51, 0x20000
    s_cmp_eq_u32 s6, 1
    s_cbranch_scc1 L_svc
    """)
    def srd_rest():
        A(f"""
        s_add_u32 s40, s12, s68
        s_addc_u32 s41, s13, 0
        s_mov_b32 s42, 98304
        s_mov_b32 s43, 0x20000
        s_mov_b64 s[52:53], s[16:17]
        s_mov_b32 s54, 7864320
        s_mov_b32 s55, 0x20000
        s_mov_b64 s[56:57], s[26:27]
        s_mov_b32 s58, 1966080
        s_mov_b32 s59, 0x20000
        s_mov_b64 s[60:61], s[20:21]
        s_movk_i32 s62, 1280
        s_mov_b32 s63, 0x20000
        s_mov_b64 s[64:65], s[28:29]
        s_movk_i32 s66, 2560
        s_mov_b32 s67, 0x20000
        s_mov_b32 s82, 0x05040100
        s_mov_b32 s83, 0x07060302
        s_lshl_b32 s73, s5, 2
        s_add_u32 s73, s73, s7
        s_lshl_b32 s73, s73, 3
        s_add_u32 s73, s73, s72
        v_mov_b32 v56, {OOB}
        v_writelane_b32 v56, s73, 0
        """)
    A("""
    s_cmp_eq_u32 s3, 0
    s_cbranch_scc0 L_nores0
    """)
    A(f"""
    v_lshlrev_b32 v57, 4, v0
    v_mov_b32 v27, {OOB}
    v_cmp_gt_u32 vcc, 48, v0
    v_cndmask_b32 v58, v27, v57, vcc
    v_mov_b32 v28, -1
    v_mov_b32 v29, -1
    v_mov_b32 v30, -1
    v_mov_b32 v31, -1
    s_mul_i32 s69, s2, 2304
    v_lshrrev_b32 v2, 4, v0
    v_and_b32 v3, 15, v0
    v_lshlrev_b32 v3, 4, v3
    v_lshl_add_u32 v59, v2, 11, v3
    v_add_u32 v60, 8192, v59
    v_cmp_gt_u32 vcc, 32, v0
    v_cndmask_b32 v60, v27, v60, vcc
    s_mul_i32 s70, s4, 12288
    s_lshl_b32 s71, s5, 8
    s_add_u32 s70, s70, s71
    s_add_u32 s70, s70, {WS_OP}
    s_lshl_b32 s71, s5, 2
    v_add_u32 v4, s71, v2
    v_mul_u32_u24 v5, 43, v4
    v_lshrrev_b32 v5, 7, v5
    v_mul_u32_u24 v6, 3, v5
    v_sub_u32 v6, v4, v6
    v_mul_u32_u24 v5, 24576, v5
    v_lshl_add_u32 v5, v6, 8, v5
    v_add_u32 v61, v5, v3
    v_cmp_gt_u32 vcc, 30, v4
    v_cndmask_b32 v61, v27, v61, vcc
    s_mul_i32 s77, s4, 768
    s_add_u32 s77, s77, {WS_Y}
    s_add_u32 s78, s77, 245760
    v_and_b32 v4, 1, v2
    v_mul_u32_u24 v4, 81920, v4
    v_lshrrev_b32 v5, 1, v2
    v_lshl_add_u32 v5, v5, 3, s5
    v_lshl_add_u32 v4, v5, 13, v4
    v_add_u32 v62, v4, v3
    v_cmp_gt_u32 vcc, 10, v5
    v_cndmask_b32 v62, v27, v62, vcc
    s_lshl_b32 s79, s4, 8
    s_add_u32 s79, s79, {WS_F}
    v_lshrrev_b32 v2, 1, v0
    v_lshlrev_b32 v2, 8, v2
    v_and_b32 v3, 1, v0
    v_lshl_add_u32 v63, v3, 4, v2
    v_cmp_gt_u32 vcc, 4, v0
    v_cndmask_b32 v63, v27, v63, vcc
    s_lshl_b32 s71, s5, 5
    s_add_u32 s71, s71, s72
    v_mov_b32 v3, s2
    v_mov_b32 v4, 1
    v_mov_b32 v5, {L_CNT+16}
    s_waitcnt lgkmcnt(0)
    s_mov_b64 s[44:45], s[32:33]
    """)
    for k in range(3):
        A(f"buffer_store_dwordx4 v[28:31], v58, s[44:47], s69 offen offset:{768*k} sc1")
    A("""
    buffer_store_dwordx4 v[28:31], v59, s[44:47], s70 offen sc1
    buffer_store_dwordx4 v[28:31], v60, s[44:47], s70 offen sc1
    buffer_store_dwordx4 v[28:31], v61, s[44:47], s77 offen sc1
    buffer_store_dwordx4 v[28:31], v61, s[44:47], s78 offen sc1
    buffer_store_dwordx4 v[28:31], v62, s[44:47], s79 offen sc1
    buffer_store_dwordx4 v[28:31], v63, s[44:47], s71 offen sc1
    """)
    a.label("L_nores0", pad=False)
    A("""
    s_waitcnt lgkmcnt(0)
    s_add_u32 s36, s10, s68
    s_addc_u32 s37, s11, 0
    s_mov_b64 s[44:45], s[32:33]
    s_mov_b64 s[48:49], s[8:9]
    """)
    for j in range(PRE):
        emit_load(j)
    srd_rest()
    A("s_barrier")
    stamp_at(3)
    for j in range(PRE, W):
        emit_load(j)
    A("""
    s_cmp_eq_u32 s3, 0
    s_cbranch_scc0 L_pre
    """)
    A(f"s_waitcnt vmcnt({W})")
    A("""
    s_mov_b64 exec, 1
    global_store_byte v3, v4, s[30:31] sc1
    ds_add_u32 v5, v4
    s_mov_b64 exec, -1
    """)
    stamp_at(1)
    A("s_branch L_pre")
    a.label("L_svc", pad=False)
    WB, PT, GB = 64, 144, 64
    A(f"""
    s_mul_i32 s69, s5, 80
    s_mul_i32 s70, s7, 20
    s_add_u32 s69, s69, s70
    s_mul_i32 s70, s69, 12288
    s_mul_i32 s71, s4, 384
    s_add_u32 s70, s70, s71
    s_mul_i32 s71, s69, 3072
    s_mul_i32 s76, s4, 96
    s_add_u32 s71, s71, s76
    v_mul_u32_u24 v58, 40, v0
    v_lshrrev_b32 v59, 5, v0
    v_mul_u32_u24 v59, 1280, v59
    v_and_b32 v2, 31, v0
    v_add_u32 v2, s69, v2
    v_lshl_add_u32 v59, v2, 1, v59
    v_mov_b32 v61, 0
    v_mov_b32 v63, 0
    v_subrev_u32 v62, 30, v0
    v_mov_b32 v60, 3072
    s_mov_b64 exec, 0x3fffffff
    v_subrev_u32 v62, 24, v0
    s_mov_b64 exec, 0xffffff
    v_mov_b32 v62, v0
    v_mov_b32 v60, 12288
    s_mov_b64 exec, 0xffff
    v_lshlrev_b32 v2, 2, v0
    v_mov_b32 v4, 0
    ds_write_b32 v2, v4 offset:{L_CNT}
    s_mov_b64 exec, -1
    s_waitcnt lgkmcnt(0)
    s_mov_b64 s[48:49], s[8:9]
    buffer_load_dwordx4 v[16:19], v58, s[48:51], 0 offen
    buffer_load_dwordx4 v[20:23], v58, s[48:51], 0 offen offset:16
    buffer_load_dwordx2 v[24:25], v58, s[48:51], 0 offen offset:32
    buffer_load_ushort v26, v59, s[48:51], 0 offen
    s_add_u32 s76, s14, s70
    s_addc_u32 s77, s15, 0
    s_add_u32 s78, s22, s71
    s_addc_u32 s79, s23, 0
    s_add_u32 s80, s24, s71
    s_addc_u32 s81, s25, 0
    v_mov_b32 v2, s80
    v_mov_b32 v3, s81
    s_mov_b64 exec, 0x3fffffff
    v_mov_b32 v2, s78
    v_mov_b32 v3, s79
    s_mov_b64 exec, 0xffffff
    v_mov_b32 v2, s76
    v_mov_b32 v3, s77
    s_mov_b32 exec_lo, -1
    s_mov_b32 exec_hi, 15
    v_lshl_add_u64 v[2:3], v[62:63], 4, v[2:3]
    """)
    for j in range(20):
        A(f"global_load_dwordx4 v[{WB+4*j}:{WB+4*j+3}], v[2:3], off nt")
        if j < 19:
            A("v_lshl_add_u64 v[2:3], v[60:61], 0, v[2:3]")
        if j == BAR_AT:
            A("s_barrier")
    A("""
    s_mov_b64 exec, -1
    s_add_u32 s36, s10, s68
    s_addc_u32 s37, s11, 0
    s_mov_b64 s[44:45], s[32:33]
    """)
    srd_rest()
    stamp_at(7)
    A("s_waitcnt vmcnt(20)")
    for k in range(10):
        A(f"v_lshlrev_b32 v{32+2*k}, 16, v{16+k}")
        A(f"v_and_b32 v{33+2*k}, 0xffff0000, v{16+k}")
    A("v_add_f32 v14, v32, v33")
    A("v_add_f32 v15, v34, v35")
    for k in range(4, 20, 2):
        A(f"v_add_f32 v14, v14, v{32+k}")
        A(f"v_add_f32 v15, v15, v{33+k}")
    A("v_add_f32 v14, v14, v15")
    red32(14, 15)
    A("v_mul_f32 v14, 0x3acccccd, v14")
    for k in range(20):
        A(f"v_sub_f32 v{32+k}, v{32+k}, v14")
    A("v_mul_f32 v12, v32, v32")
    A("v_mul_f32 v13, v33, v33")
    for k in range(2, 20, 2):
        A(f"v_fmac_f32 v12, v{32+k}, v{32+k}")
        A(f"v_fmac_f32 v13, v{33+k}, v{33+k}")
    A("v_add_f32 v12, v12, v13")
    red32(12, 13)
    A("v_mul_f32 v12, 0x3acccccd, v12")
    rbf(14, 14)
    rbf(12, 12)
    A("v_add_f32 v12, 0x3727c5ac, v12")
    rbf(12, 12)
    A("v_sqrt_f32 v12, v12")
    rbf(12, 12)
    A("v_rcp_f32 v13, v12")
    A("v_lshlrev_b32 v26, 16, v26")
    A("v_sub_f32 v26, v26, v14")
    rbf(26, 26)
    A("""
    v_mul_f32 v15, v26, v13
    v_fma_f32 v11, -v15, v12, v26
    v_fmac_f32 v15, v11, v13
    v_mov_b32_dpp v11, v15 quad_perm:[1,0,3,2] row_mask:0xf bank_mask:0xf
    v_cvt_pk_bf16_f32 v15, v15, v11
    """)
    A(f"""
    v_lshrrev_b32 v2, 5, v0
    v_lshlrev_b32 v2, 4, v2
    ds_write_b96 v2, v[12:14] offset:{L_LN}
    """)
    for b in range(2):
        for p in range(10):
            A(f"v_readlane_b32 s{8+10*b+p}, v15, {32*b+2*p}")
    for k in range(16):
        A(f"v_mov_b32 v{32+k}, 0")
    for p in range(10):
        A(f"s_waitcnt vmcnt({18-2*p})")
        r0, r1 = WB + 8 * p, WB + 8 * p + 4
        for k in range(4):
            A(f"v_perm_b32 v{PT+2*k}, v{r1+k}, v{r0+k}, s82")
            A(f"v_perm_b32 v{PT+2*k+1}, v{r1+k}, v{r0+k}, s83")
        for b in range(2):
            for c in range(8):
                A(f"v_dot2c_f32_bf16 v{32+8*b+c}, s{8+10*b+p}, v{PT+c}")
    A(f"""
    s_mul_i32 s34, s7, 2304
    v_lshl_add_u32 v2, v0, 5, s34
    v_mov_b32 v3, {L_CNT+16}
    v_mov_b32 v4, 1
    s_mov_b32 exec_hi, 15
    ds_write_b128 v2, v[32:35] offset:{L_PART}
    ds_write_b128 v2, v[36:39] offset:{L_PART+16}
    ds_write_b128 v2, v[40:43] offset:{L_PART+1152}
    ds_write_b128 v2, v[44:47] offset:{L_PART+1168}
    s_mov_b64 exec, 1
    ds_add_u32 v3, v4
    s_mov_b64 exec, -1
    s_cmp_eq_u32 s3, 7
    s_cbranch_scc1 L_w7_pub
    """)
    stamp_at(1)
    A("""
    s_waitcnt lgkmcnt(0)
    s_barrier
    s_branch L_gate
    """)
    a.label("L_w7_pub", pad=False)
    A(f"""
    v_lshlrev_b32 v2, 4, v0
    s_lshl_b32 s35, s4, 3
    s_mul_i32 s34, s4, 18432
    s_add_u32 s78, s32, s34
    s_addc_u32 s79, s33, 0
    """)
    spin("L_pwait")
    A(f"""
    ds_read_b32 v4, v3
    s_waitcnt lgkmcnt(0)
    v_readfirstlane_b32 s34, v4
    s_cmp_eq_u32 s34, 5
    s_cbranch_scc0 L_pwait
    s_mov_b32 exec_hi, 0xffff
    """)
    stamp_at(1)
    for r in range(3):
        for w in range(4):
            A(f"ds_read_b128 v[{GB+16*r+4*w}:{GB+16*r+4*w+3}], v2 offset:{L_PART+w*2304+768*r}")
    A("s_mul_i32 s34, s2, 2304")
    for r in range(3):
        A(f"s_waitcnt lgkmcnt({4*(2-r)})")
        g = GB + 16 * r
        for st in (8, 4):
            for k in range(st):
                A(f"v_add_f32 v{g+k}, v{g+k}, v{g+st+k}")
        A(f"buffer_store_dwordx4 v[{g}:{g+3}], v2, s[44:47], s34 offen offset:{768*r} sc1")
    stamp_at(2)
    A(f"""
    s_mov_b32 exec_hi, -1
    v_lshrrev_b32 v3, 3, v0
    v_mul_u32_u24 v3, 24, v3
    v_bfe_u32 v4, v0, 2, 1
    v_mul_u32_u24 v4, 1152, v4
    v_bfe_u32 v5, v0, 1, 1
    v_mul_u32_u24 v5, 192, v5
    v_add3_u32 v3, v3, v4, v5
    v_and_b32 v4, 1, v0
    v_mul_u32_u24 v4, 12, v4
    v_add_u32 v3, v3, v4
    v_lshlrev_b32 v4, 3, v0
    v_mov_b32 v5, {OOB}
    v_cmp_gt_u32 vcc, 48, v0
    v_cndmask_b32 v2, v5, v2, vcc
    """)
    spin("L_qpoll")
    A("""
    s_load_dwordx2 s[8:9], s[30:31], s35 glc
    s_waitcnt lgkmcnt(0)
    s_and_b32 s8, s8, s9
    s_cmp_eq_u32 s8, 0x01010101
    s_cbranch_scc1 L_tpoll
    s_sleep 4
    s_branch L_qpoll
    """)
    spin("L_tpoll")
    for xp in range(8):
        A(f"s_load_dword s{8+xp}, s[78:79], {xp*2304+2300} glc")
    A("s_waitcnt lgkmcnt(0)")
    for xp in range(1, 8):
        A(f"s_max_u32 s8, s8, s{8+xp}")
    A("""
    s_cmp_eq_u32 s8, -1
    s_cbranch_scc1 L_tpoll
    """)
    G2 = 128
    A("s_mul_i32 s34, s4, 18432")
    for xp in range(8):
        for b in range(2):
            A(f"buffer_load_dwordx4 v[{G2+32*b+4*xp}:{G2+32*b+4*xp+3}], v2, s[44:47], s34 offen offset:{1152*b} sc1")
        if xp < 7:
            A("s_add_u32 s34, s34, 2304")
    A("s_waitcnt vmcnt(0)")
    A(f"v_max_u32 v12, v{G2}, v{G2+1}")
    A(f"v_max_u32 v13, v{G2+2}, v{G2+3}")
    for k in range(4, 64, 4):
        A(f"v_max3_u32 v12, v12, v{G2+k}, v{G2+k+1}")
        A(f"v_max3_u32 v13, v13, v{G2+k+2}, v{G2+k+3}")
    A("""
    v_max_u32 v12, v12, v13
    v_cmp_eq_u32 vcc, -1, v12
    s_cbranch_vccnz L_tpoll
    """)
    stamp_at(3)
    for b in range(2):
        g = G2 + 32 * b
        for st in (16, 8, 4):
            for k in range(st):
                A(f"v_add_f32 v{g+k}, v{g+k}, v{g+st+k}")
        A(f"v_cvt_pk_bf16_f32 v{g}, v{g}, v{g+1}")
        A(f"v_cvt_pk_bf16_f32 v{g+1}, v{g+2}, v{g+3}")
    A(f"""
    s_mov_b32 exec_hi, 0xffff
    ds_write_b64 v4, v[{G2}:{G2+1}] offset:{L_Q}
    ds_write_b64 v4, v[{G2+32}:{G2+33}] offset:{L_Q+384}
    s_mov_b32 exec_hi, -1
    s_waitcnt lgkmcnt(0)
    s_barrier
    """)
    FG = 64
    spin("L_fgath")
    A("s_mul_i32 s34, s4, 18432")
    for xp in range(8):
        A(f"buffer_load_dwordx3 v[{FG+4*xp}:{FG+4*xp+2}], v3, s[44:47], s34 offen offset:768 sc1")
        if xp < 7:
            A("s_add_u32 s34, s34, 2304")
    A("s_waitcnt vmcnt(0)")
    A(f"v_max3_u32 v12, v{FG}, v{FG+1}, v{FG+2}")
    for xp in range(1, 8):
        A(f"v_max3_u32 v13, v{FG+4*xp}, v{FG+4*xp+1}, v{FG+4*xp+2}")
        A("v_max_u32 v12, v12, v13")
    A("""
    v_cmp_eq_u32 vcc, -1, v12
    s_cbranch_vccnz L_fgath
    """)
    for st in (16, 8, 4):
        for k in range(st):
            if k % 4 != 3:
                A(f"v_add_f32 v{FG+k}, v{FG+k}, v{FG+st+k}")
    for r in (FG, FG + 1, FG + 2):
        rbf(r, r)
        A(f"""
        v_mov_b32_dpp v12, v{r} quad_perm:[2,3,0,1] row_mask:0xf bank_mask:0xf
        v_mul_f32 v13, 0xbfb8aa3b, v{r}
        v_exp_f32 v13, v13
        v_add_f32 v13, 1.0, v13
        v_rcp_f32 v13, v13
        v_mul_f32 v13, v{r}, v13
        """)
        rbf(13, 13)
        A(f"""
        v_mul_f32 v{r}, v13, v12
        v_mov_b32_dpp v12, v{r} quad_perm:[1,0,3,2] row_mask:0xf bank_mask:0xf
        v_cvt_pk_bf16_f32 v{r}, v{r}, v12
        """)
    for b in range(2):
        for j in range(3):
            obcast(16 + 3 * b + j, FG + j, 4 * b)
    A(f"""
    v_lshrrev_b32 v4, 3, v0
    v_mul_u32_u24 v2, 7680, v4
    v_and_b32 v5, 7, v0
    v_lshl_add_u32 v2, v5, 4, v2
    v_lshlrev_b32 v3, 2, v4
    v_lshl_add_u32 v3, v5, 5, v3
    s_mov_b32 s12, 0xff00ff00
    s_mov_b32 s13, 0xff00ff00
    s_mov_b32 s18, s5
    """)
    DB, DP = 96, 128
    a.label("L_ftask")
    A(f"""
    s_mul_i32 s34, s4, 61440
    s_lshl_b32 s35, s18, 7
    s_add_u32 s34, s34, s35
    s_add_u32 s35, s34, 3840
    """)
    for j in range(6):
        A(f"buffer_load_dwordx4 v[{DB+4*j}:{DB+4*j+3}], v2, s[56:59], s{34 if j < 3 else 35} offen offset:{(j%3)*1280} nt")
    for k in range(16):
        A(f"v_mov_b32 v{32+k}, 0")
    A(f"""
    s_lshl_b32 s34, s18, 13
    s_lshl_b32 s35, s4, 8
    s_add_u32 s34, s34, s35
    s_add_u32 s34, s34, {WS_F}
    s_add_u32 s35, s34, 81920
    s_waitcnt vmcnt(0)
    """)
    for j in range(3):
        r0, r1 = DB + 4 * j, DB + 4 * (j + 3)
        for k in range(4):
            A(f"v_perm_b32 v{DP+8*j+2*k}, v{r1+k}, v{r0+k}, s82")
            A(f"v_perm_b32 v{DP+8*j+2*k+1}, v{r1+k}, v{r0+k}, s83")
    for j in range(3):
        for b in range(2):
            for c in range(8):
                A(f"v_dot2c_f32_bf16 v{32+8*b+c}, v{16+3*b+j}, v{DP+8*j+c}")
    oct_red8(32)
    oct_red8(40)
    A("""
    buffer_store_dword v32, v3, s[44:47], s34 offen sc1
    buffer_store_dword v40, v3, s[44:47], s35 offen sc1
    s_add_u32 s18, s18, 8
    s_cmp_lt_u32 s18, 10
    s_cbranch_scc1 L_ftask
    """)
    a.label("L_gate")
    A(f"""
    s_lshl_b32 s34, s7, 2
    v_mov_b32 v3, s34
    """)
    spin("L_gwait")
    A(f"""
    s_sleep 2
    ds_read_b32 v4, v3 offset:{L_CNT+32}
    s_waitcnt lgkmcnt(0)
    v_readfirstlane_b32 s34, v4
    s_cmp_eq_u32 s34, 0
    s_cbranch_scc1 L_gwait
    """)
    for j in range(W):
        emit_load(j)
    a.label("L_pre", pad=False)
    for j in range(W, 3 * D):
        A(f"s_waitcnt vmcnt({WF(j)-1})")
        emit_load(j)
    A("""
    s_cmp_eq_u32 s6, 0
    s_cbranch_scc0 L_main
    """)
    if ts: A("s_memrealtime s[88:89]")
    A("""
    s_waitcnt lgkmcnt(0)
    s_barrier
    """)
    a.label("L_main")
    stamp_at(4)
    A(f"""
    v_and_b32 v2, 7, v0
    v_lshlrev_b32 v2, 4, v2
    s_mul_i32 s34, s6, 384
    v_add_u32 v2, s34, v2
    ds_read_b128 v[4:7], v2 offset:{L_Q}
    ds_read_b128 v[8:11], v2 offset:{L_Q+128}
    ds_read_b128 v[12:15], v2 offset:{L_Q+256}
    s_mov_b32 s8, 0xaaaaaaaa
    s_mov_b32 s9, 0xaaaaaaaa
    s_mov_b32 s10, 0xcccccccc
    s_mov_b32 s11, 0xcccccccc
    s_mov_b32 s12, 0xff00ff00
    s_mov_b32 s13, 0xff00ff00
    v_and_b32 v3, 31, v0
    v_lshl_add_u32 v59, v3, 3, s72
    s_lshl_b32 s34, s7, 2
    v_mov_b32 v57, s34
    v_mov_b32 v58, 1
    s_waitcnt lgkmcnt(0)
    """)
    Q = list(range(3 * D - WF(3*D-1), 3 * D))
    NL = 192
    issued = 3 * D
    def ensure_landed(tag):
        if tag in Q:
            idx = Q.index(tag)
            after = len(Q) - 1 - idx
            A(f"s_waitcnt vmcnt({after})")
            del Q[:idx + 1]
    def compute(j, grp=False):
        ten, g, t = j // 96, (j % 96) // 3, j % 3
        r = lreg(j)
        if ten == 0:
            P = 16 + g % 8
            ACC = [P, 28, 29]
            if grp:
                for tt in range(3):
                    A(f"v_mov_b32 v{ACC[tt]}, 0")
                for k in range(4):
                    for tt in range(3):
                        A(f"v_dot2c_f32_bf16 v{ACC[tt]}, v{lreg(j-2+tt)+k}, v{4+4*tt+k}")
                A(f"v_add_f32 v28, v28, v29")
                A(f"v_add_f32 v{P}, v{P}, v28")
            else:
                if t == 0:
                    A(f"v_mov_b32 v{P}, 0")
                    A(f"v_mov_b32 v28, 0")
                ensure_landed(j)
                A(f"v_dot2c_f32_bf16 v{P}, v{r}, v{4+4*t}")
                A(f"v_dot2c_f32_bf16 v28, v{r+1}, v{5+4*t}")
                A(f"v_dot2c_f32_bf16 v{P}, v{r+2}, v{6+4*t}")
                A(f"v_dot2c_f32_bf16 v28, v{r+3}, v{7+4*t}")
                if t == 2:
                    A(f"v_add_f32 v{P}, v{P}, v28")
            if t == 2 and g % 8 == 7:
                S = 24 + g // 8
                for q in range(4):
                    A(f"v_add_f32_dpp v{16+q}, v{16+q}, v{16+q} row_shl:4 row_mask:0xf bank_mask:0x5")
                for q in range(4):
                    A(f"v_add_f32_dpp v{16+q}, v{20+q}, v{20+q} row_shr:4 row_mask:0xf bank_mask:0xa")
                for q in range(4):
                    A(f"v_add_f32_dpp v{16+q}, v{16+q}, v{16+q} quad_perm:[2,3,0,1] row_mask:0xf bank_mask:0xf")
                A("v_cndmask_b32 v16, v16, v18, s[10:11]")
                A("v_cndmask_b32 v17, v17, v19, s[10:11]")
                A("v_add_f32_dpp v16, v16, v16 quad_perm:[1,0,3,2] row_mask:0xf bank_mask:0xf")
                A("v_add_f32_dpp v17, v17, v17 quad_perm:[1,0,3,2] row_mask:0xf bank_mask:0xf")
                A(f"v_cndmask_b32 v{S}, v16, v17, s[8:9]")
        else:
            k8, i = g // 8, g % 8
            pl, ph = (28, 29) if g % 2 == 0 else (30, 31)
            if t == 0:
                obcast(pl, 24 + k8, i)
                A(f"v_lshlrev_b32 v{ph}, 16, v{pl}")
            ensure_landed(j)
            for k in range(4):
                A(f"v_dot2c_f32_bf16 v{32+8*t+2*k}, v{r+k}, v{pl}")
                A(f"v_dot2c_f32_bf16 v{33+8*t+2*k}, v{r+k}, v{ph}")
    def mid_parts():
        def p0():
            stamp_at(5)
            for s0 in (24, 26):
                A(f"""
                v_cvt_pk_bf16_f32 v2, v{s0}, v{s0+1}
                v_lshlrev_b32 v{s0}, 16, v2
                v_and_b32 v{s0+1}, 0xffff0000, v2
                v_mul_f32 v{s0}, {hex(SCALE)}, v{s0}
                v_mul_f32 v{s0+1}, {hex(SCALE)}, v{s0+1}
                v_cvt_pk_bf16_f32 v2, v{s0}, v{s0+1}
                v_lshlrev_b32 v{s0}, 16, v2
                v_and_b32 v{s0+1}, 0xffff0000, v2
                """)
            A("v_max3_f32 v62, v24, v25, v26")
            A("v_max_f32 v62, v62, v27")
        def p1():
            red64(62, 2, "v_max_f32")
        def p2():
            for s0 in range(24, 28):
                A(f"v_sub_f32 v{s0}, v{s0}, v62")
            for s0 in range(24, 28):
                A(f"v_mul_f32 v{s0}, {hex(LOG2E)}, v{s0}")
            for s0 in range(24, 28):
                A(f"v_exp_f32 v{s0}, v{s0}")
            A("v_add_f32 v63, v24, v25")
            A("v_add_f32 v2, v26, v27")
            A("v_add_f32 v63, v63, v2")
            for s0 in range(24, 28):
                A(f"v_cvt_pk_bf16_f32 v{s0}, v{s0}, 0")
            for k in range(24):
                A(f"v_mov_b32 v{32+k}, 0")
        def p3():
            red64(63, 2)
            A("buffer_store_dwordx2 v[62:63], v56, s[44:47], 0 offen sc1")
            Q.append("mls")
        def p4():
            A(f"""
            s_lshl_b32 s34, s3, 10
            v_lshl_add_u32 v4, v0, 4, s34
            s_lshl_b32 s35, s6, 2
            v_mov_b32 v5, s35
            s_lshl_b32 s34, s6, 12
            v_lshl_add_u32 v6, v0, 4, s34
            v_lshlrev_b32 v7, 2, v0
            s_mul_i32 s14, s4, 12288
            s_mul_i32 s35, s6, 6144
            s_add_u32 s14, s14, s35
            s_lshl_b32 s35, s5, 8
            s_add_u32 s14, s14, s35
            s_add_u32 s14, s14, {WS_OP}
            s_add_u32 s15, s14, 4096
            """)
        return [p0, p1, p2, p3, p4]
    def ml_calc():
        ensure_landed("ml")
        A("s_branch L_mlcalc")
        spin("L_mlretry")
        A("""
        s_sleep 8
        buffer_load_dwordx2 v[60:61], v59, s[44:47], 0 offen sc1
        s_waitcnt vmcnt(0)
        """)
        a.label("L_mlcalc")
        A("""
        v_max_u32 v2, v60, v61
        v_cmp_eq_u32 vcc, -1, v2
        s_cbranch_vccnz L_mlretry
        v_mov_b32 v3, v60
        """)
        red32(3, 2, "v_max_f32")
        A(f"""
        v_sub_f32 v60, v60, v3
        v_sub_f32 v62, v62, v3
        v_mul_f32 v60, {hex(LOG2E)}, v60
        v_mul_f32 v62, {hex(LOG2E)}, v62
        v_exp_f32 v60, v60
        v_exp_f32 v62, v62
        v_mul_f32 v60, v60, v61
        """)
        red32(60, 2)
        A("""
        v_rcp_f32 v60, v60
        v_mul_f32 v62, v62, v60
        """)
    work = []
    for j in range(96): work.append(("c", j))
    for fn in mid_parts(): work.append(("f", fn))
    for j in range(96, 192): work.append(("c", j))
    wi = 0
    done_c = 0
    while wi < len(work):
        if issued < NL and issued - 3 * D < done_c:
            Wj = WF(issued)
            if len(Q) > Wj - 1:
                A(f"s_waitcnt vmcnt({Wj-1})")
                del Q[:len(Q) - (Wj - 1)]
            if issued == NL - 12:
                A("buffer_load_dwordx2 v[60:61], v59, s[44:47], 0 offen sc1")
                Q.append("ml")
            emit_load(issued)
            Q.append(issued)
            issued += 1
            if issued == NL - GATE_EARLY:
                A(f"ds_write_b32 v57, v58 offset:{L_CNT+32}")
            if issued == NL:
                ml_calc()
        n = 0
        while wi < len(work) and n < CATCH:
            kind, v = work[wi]
            if kind == "f":
                if n > 0: break
                v(); wi += 1; n = CATCH
                break
            if v in Q and issued < NL and issued - 3 * D < done_c:
                break
            if v < 96 and v % 3 == 0 and n == 0 and CATCH >= 3 and (v + 2) not in Q and v + 2 < issued:
                compute(v + 2, grp=True); wi += 3; done_c += 3; n += 3
                continue
            compute(v); wi += 1; done_c += 1
            n += (1 if v < 96 else 2)
    stamp_at(6)
    for k in range(12):
        A(f"v_permlane32_swap_b32 v{32+k}, v{44+k}")
    for k in range(12):
        A(f"v_add_f32 v{32+k}, v{32+k}, v{44+k}")
    for k in range(6):
        A(f"v_permlane16_swap_b32 v{32+k}, v{38+k}")
    for k in range(6):
        A(f"v_add_f32 v{32+k}, v{32+k}, v{38+k}")
    for k in range(3):
        A(f"v_add_f32_dpp v{32+k}, v{32+k}, v{32+k} row_ror:8 row_mask:0xf bank_mask:0x3")
    for k in range(3):
        A(f"v_add_f32_dpp v{32+k}, v{35+k}, v{35+k} row_ror:8 row_mask:0xf bank_mask:0xc")
    for k in range(3):
        A(f"v_mul_f32 v{32+k}, v{32+k}, v62")
    A(f"""
    ds_write_b96 v4, v[32:34] offset:{L_O}
    s_mov_b64 exec, 1
    ds_add_rtn_u32 v2, v5, v58 offset:{L_CNT}
    s_mov_b64 exec, -1
    ds_read_b96 v[32:34], v6 offset:{L_O}
    ds_read_b96 v[36:38], v6 offset:{L_O+1024}
    ds_read_b96 v[40:42], v6 offset:{L_O+2048}
    ds_read_b96 v[44:46], v6 offset:{L_O+3072}
    s_waitcnt lgkmcnt(4)
    v_readfirstlane_b32 s35, v2
    s_cmp_eq_u32 s35, 3
    s_cbranch_scc0 L_notlast
    s_waitcnt lgkmcnt(2)
    v_add_f32 v32, v32, v36
    v_add_f32 v33, v33, v37
    v_add_f32 v34, v34, v38
    s_waitcnt lgkmcnt(0)
    v_add_f32 v40, v40, v44
    v_add_f32 v41, v41, v45
    v_add_f32 v42, v42, v46
    v_add_f32 v32, v32, v40
    buffer_store_dword v32, v7, s[44:47], s14 offen sc1
    v_add_f32 v33, v33, v41
    buffer_store_dword v33, v7, s[44:47], s14 offen offset:2048 sc1
    v_add_f32 v34, v34, v42
    buffer_store_dword v34, v7, s[44:47], s15 offen sc1
    """)
    a.label("L_notlast")
    A("s_waitcnt lgkmcnt(0)")
    A("s_cmp_eq_u32 s6, 1")
    A("s_cbranch_scc1 L_fin")
    WR, WP, RR = 64, 96, 128
    A(f"""
    s_lshl_b32 s34, s5, 2
    s_add_u32 s34, s34, s7
    s_mul_i32 s18, s34, 43
    s_lshr_b32 s18, s18, 7
    s_mul_i32 s19, s18, 3
    s_sub_u32 s19, s34, s19
    s_cmp_lt_u32 s34, 30
    s_cselect_b32 s20, 1, 0
    s_cmp_lt_u32 s2, 80
    s_cselect_b32 s21, 1, 0
    s_cmp_eq_u32 s7, 3
    s_cselect_b32 s21, s21, 0
    s_or_b32 s34, s20, s21
    s_cmp_eq_u32 s34, 0
    s_cbranch_scc1 L_fin
    v_lshrrev_b32 v2, 3, v0
    v_mul_u32_u24 v3, 3, v2
    v_add_u32 v3, s19, v3
    v_lshrrev_b32 v4, 3, v3
    v_and_b32 v3, 7, v3
    v_lshl_add_u32 v3, v4, 6, v3
    v_mul_u32_u24 v3, 1280, v3
    v_and_b32 v5, 7, v0
    v_lshl_add_u32 v3, v5, 4, v3
    v_lshlrev_b32 v9, 2, v2
    v_lshl_add_u32 v9, v5, 5, v9
    s_mul_i32 s34, s4, 245760
    s_lshl_b32 s35, s18, 7
    s_add_u32 s34, s34, s35
    s_mul_i32 s16, s4, 12288
    s_lshl_b32 s35, s19, 11
    s_add_u32 s16, s16, s35
    s_add_u32 s16, s16, {WS_OP}
    s_mul_i32 s22, s18, 24576
    s_mul_i32 s35, s4, 768
    s_add_u32 s22, s22, s35
    s_lshl_b32 s35, s19, 8
    s_add_u32 s22, s22, s35
    s_add_u32 s22, s22, {WS_Y}
    s_mov_b32 s17, 0
    s_cmp_eq_u32 s20, 0
    s_cbranch_scc1 L_rinit
    """)
    for i in range(8):
        if i >= 2:
            A("s_waitcnt vmcnt(1)")
        A(f"buffer_load_dwordx4 v[{WR+4*i}:{WR+4*i+3}], v3, s[52:55], s34 offen nt")
        A("s_add_u32 s34, s34, 10240")
    A("s_waitcnt vmcnt(0)")
    for i2 in range(4):
        r0, r1 = WR + 8 * i2, WR + 8 * i2 + 4
        for k in range(4):
            A(f"v_perm_b32 v{WP+8*i2+2*k}, v{r1+k}, v{r0+k}, s82")
            A(f"v_perm_b32 v{WP+8*i2+2*k+1}, v{r1+k}, v{r0+k}, s83")
    a.label("L_rinit")
    A("""
    s_cmp_eq_u32 s21, 0
    s_cbranch_scc1 L_oloop
    """)
    A(f"""
    s_cmp_ge_u32 s2, 40
    s_cselect_b32 s23, 1, 0
    s_mul_i32 s24, s23, 40
    s_sub_u32 s24, s2, s24
    s_lshl_b32 s35, s23, 4
    v_mov_b32 v2, s35
    ds_read_b96 v[28:30], v2 offset:{L_LN}
    s_mul_i32 s34, s23, 1280
    v_mul_u32_u24 v2, 20, v0
    buffer_load_dwordx4 v[16:19], v2, s[48:51], s34 offen
    buffer_load_dword v20, v2, s[48:51], s34 offen offset:16
    buffer_load_dwordx4 v[22:25], v2, s[60:63], 0 offen
    buffer_load_dword v26, v2, s[60:63], 0 offen offset:16
    v_and_b32 v3, 3, v0
    v_lshlrev_b32 v3, 2, v3
    v_lshrrev_b32 v4, 4, v0
    v_add_u32 v3, v3, v4
    s_lshl_b32 s35, s24, 4
    v_add_u32 v3, s35, v3
    v_lshl_add_u32 v10, v3, 1, s34
    buffer_load_ushort v11, v10, s[48:51], 0 offen
    s_mov_b32 s35, 0x01010101
    """)
    spin("L_fpoll")
    A("""
    global_load_dword v6, v7, s[30:31] sc1
    s_waitcnt vmcnt(0) lgkmcnt(0)
    v_cmp_ne_u32 vcc, s35, v6
    s_cbranch_vccnz L_fpoll
    v_mov_b32 v13, 0
    """)
    def xnorm(d, t):
        A(f"v_sub_f32 v{d}, v{d}, v30")
        rbf(d, d)
        A(f"""
        v_mul_f32 v{t}, v{d}, v29
        v_fma_f32 v{d}, -v{t}, v28, v{d}
        v_fma_f32 v{d}, v{d}, v29, v{t}
        """)
    for k in range(5):
        A(f"v_lshlrev_b32 v2, 16, v{16+k}")
        A(f"v_and_b32 v3, 0xffff0000, v{16+k}")
        xnorm(2, 4)
        xnorm(3, 4)
        A("v_cvt_pk_bf16_f32 v2, v2, v3")
        A(f"v_dot2c_f32_bf16 v13, v2, v{22+k}")
    red64(13, 2)
    rbf(13, 13)
    A("""
    v_mul_f32 v13, 0xbfb8aa3b, v13
    v_exp_f32 v13, v13
    v_add_f32 v13, 1.0, v13
    v_rcp_f32 v13, v13
    """)
    rbf(13, 13)
    A("v_lshlrev_b32 v11, 16, v11")
    A("v_mov_b32 v12, v11")
    xnorm(12, 4)
    rbf(12, 12)
    A(f"""
    v_lshrrev_b32 v2, 2, v0
    v_lshlrev_b32 v2, 8, v2
    v_and_b32 v3, 3, v0
    v_lshl_add_u32 v14, v3, 4, v2
    s_and_b32 s34, s24, 3
    s_lshl_b32 s34, s34, 6
    v_add_u32 v14, s34, v14
    s_lshr_b32 s34, s24, 2
    s_mul_i32 s35, s23, 10
    s_add_u32 s34, s34, s35
    s_lshl_b32 s25, s34, 13
    s_add_u32 s25, s25, {WS_F}
    s_add_u32 s26, s25, 4096
    v_mov_b32 v15, {OOB}
    s_mul_i32 s71, s34, 24576
    s_add_u32 s71, s71, {WS_Y}
    s_add_u32 s27, s71, 8192
    s_add_u32 s68, s71, 12288
    s_add_u32 s69, s71, 16384
    s_add_u32 s70, s71, 20480
    """)
    a.label("L_oloop")
    A(f"""
    s_lshl_b32 s34, s17, 2
    v_mov_b32 v3, s34
    """)
    spin("L_cwait")
    A(f"""
    ds_read_b32 v4, v3 offset:{L_CNT}
    s_waitcnt lgkmcnt(0)
    v_readfirstlane_b32 s34, v4
    s_cmp_eq_u32 s34, 4
    s_cbranch_scc1 L_go
    s_sleep 2
    s_branch L_cwait
    """)
    a.label("L_go", pad=False)
    A("""
    s_cmp_eq_u32 s20, 0
    s_cbranch_scc1 L_rpoll
    """)
    spin("L_opoll")
    for xp in range(8):
        A(f"buffer_load_dword v{16+xp}, v7, s[44:47], s16 offen offset:{256*xp} sc1")
    for k in range(8):
        A(f"v_mov_b32 v{32+k}, 0")
    A("""
    s_waitcnt vmcnt(0)
    v_max3_u32 v2, v16, v17, v18
    v_max3_u32 v3, v19, v20, v21
    v_add_f32 v16, v16, v17
    v_add_f32 v18, v18, v19
    v_max3_u32 v2, v2, v22, v23
    v_add_f32 v20, v20, v21
    v_add_f32 v22, v22, v23
    v_max_u32 v2, v2, v3
    v_add_f32 v16, v16, v18
    v_cmp_eq_u32 vcc, -1, v2
    v_add_f32 v20, v20, v22
    s_cbranch_vccnz L_opoll
    v_add_f32 v16, v16, v20
    v_mov_b32_dpp v17, v16 quad_perm:[1,0,3,2] row_mask:0xf bank_mask:0xf
    v_cvt_pk_bf16_f32 v16, v16, v17
    """)
    for i2 in range(4):
        A(f"v_mov_b32_dpp v{20+i2}, v16 row_newbcast:{2*i2} row_mask:0xf bank_mask:0x3")
    for i2 in range(4):
        A(f"v_mov_b32_dpp v{20+i2}, v16 row_newbcast:{8+2*i2} row_mask:0xf bank_mask:0xc")
    for i2 in range(4):
        for c in range(8):
            A(f"v_dot2c_f32_bf16 v{32+c}, v{20+i2}, v{WP+8*i2+c}")
    oct_red8(32)
    A("buffer_store_dword v32, v9, s[44:47], s22 offen sc1")
    stamp_at(7)
    A("""
    s_cmp_eq_u32 s21, 0
    s_cbranch_scc1 L_onext
    """)
    spin("L_rpoll")
    SO = [25, 26, 27, 68, 69, 70]
    for k in range(6):
        A(f"buffer_load_dwordx4 v[{RR+4*k}:{RR+4*k+3}], v{14 if k < 2 else 15}, s[44:47], s{SO[k]} offen sc1")
    A("s_waitcnt vmcnt(0)")
    A(f"v_max3_u32 v2, v{RR}, v{RR+1}, v{RR+2}")
    A(f"v_max3_u32 v3, v{RR+3}, v{RR+4}, v{RR+5}")
    for k in range(6, 24, 4):
        A(f"v_max3_u32 v2, v2, v{RR+k}, v{RR+k+1}")
        if k + 3 < 24:
            A(f"v_max3_u32 v3, v3, v{RR+k+2}, v{RR+k+3}")
    A("""
    v_max_u32 v2, v2, v3
    v_cmp_eq_u32 vcc, -1, v2
    """)
    for k in range(12):
        A(f"v_add_f32 v{RR+k}, v{RR+k}, v{RR+12+k}")
    A("s_cbranch_vccnz L_rpoll")
    for k in range(4):
        A(f"v_add_f32 v{RR+k}, v{RR+k}, v{RR+4+k}")
    for k in range(4):
        A(f"v_add_f32 v{RR+k}, v{RR+k}, v{RR+8+k}")
    A(f"""
    v_permlane32_swap_b32 v{RR}, v{RR+2}
    v_permlane32_swap_b32 v{RR+1}, v{RR+3}
    v_add_f32 v{RR}, v{RR}, v{RR+2}
    v_add_f32 v{RR+1}, v{RR+1}, v{RR+3}
    v_permlane16_swap_b32 v{RR}, v{RR+1}
    v_add_f32 v16, v{RR}, v{RR+1}
    v_add_f32_dpp v16, v16, v16 row_ror:8 row_mask:0xf bank_mask:0xf
    v_add_f32_dpp v16, v16, v16 row_ror:4 row_mask:0xf bank_mask:0xf
    """)
    rbf(16, 16)
    A("v_mul_f32 v16, v16, v13")
    rbf(16, 16)
    A("""
    v_add_f32 v16, v12, v16
    v_cvt_pk_bf16_f32 v16, v16, v16
    s_cmp_eq_u32 s17, 0
    s_cbranch_scc1 L_gcalc
    buffer_store_short v16, v10, s[64:67], 0 offen
    s_branch L_fin
    """)
    a.label("L_gcalc")
    A("""
    v_and_b32 v16, 0xffff0000, v16
    v_mul_f32 v17, 0xbfb8aa3b, v16
    v_exp_f32 v17, v17
    v_add_f32 v17, 1.0, v17
    v_rcp_f32 v17, v17
    v_mul_f32 v13, v16, v17
    """)
    rbf(13, 13)
    A("""
    v_mov_b32 v12, v11
    s_mov_b32 s25, s71
    s_add_u32 s26, s71, 4096
    v_mov_b32 v15, v14
    """)
    a.label("L_onext")
    A("""
    s_add_u32 s16, s16, 6144
    s_add_u32 s22, s22, 245760
    s_add_u32 s17, s17, 1
    s_cmp_lt_u32 s17, 2
    s_cbranch_scc1 L_oloop
    """)
    a.label("L_fin")
    if ts:
        stamp_at(8)
        A("""
        s_waitcnt lgkmcnt(0)
        s_add_u32 s32, s32, 0x4000000
        s_addc_u32 s33, s33, 0
        s_lshl_b32 s34, s2, 3
        s_add_u32 s34, s34, s3
        s_lshl_b32 s34, s34, 7
        v_mov_b32 v1, s34
        s_mov_b64 exec, 1
        """)
        for k in range(9):
            A(f"v_mov_b32 v2, s{84+2*k}")
            A(f"v_mov_b32 v3, s{85+2*k}")
            A(f"global_store_dwordx2 v1, v[2:3], s[32:33] offset:{8*k} sc1")
    a.label("L_end", pad=False)
    A("s_endpgm")
    a.raw('.section .rodata,"a"')
    a.raw(".p2align 6")
    a.raw(f".amdhsa_kernel {KNAME}")
    a.raw("  .amdhsa_next_free_vgpr 256")
    a.raw("  .amdhsa_next_free_sgpr 102")
    a.raw("  .amdhsa_accum_offset 256")
    a.raw("  .amdhsa_group_segment_fixed_size 0")
    a.raw("  .amdhsa_kernarg_size 104")
    a.raw("  .amdhsa_user_sgpr_count 2")
    a.raw("  .amdhsa_user_sgpr_kernarg_segment_ptr 1")
    a.raw("  .amdhsa_system_sgpr_workgroup_id_x 1")
    a.raw("  .amdhsa_float_denorm_mode_32 3")
    a.raw(".end_amdhsa_kernel")
    return a.text()

def wf(w1, w2, w3, w4, e2=84, e3=170):
    return lambda j: w1 if j < 48 else (w2 if j < e2 else (w3 if j < e3 else w4))
if __name__ == "__main__":
    open("v7ats.s", "w").write(gen(ts=True, WF=wf(6,6,6,6)))
    open("v7bts.s", "w").write(gen(ts=True, WF=wf(6,6,5,8)))
    open("v7cts.s", "w").write(gen(ts=True, WF=wf(6,8,5,10)))
    open("v7dts.s", "w").write(gen(ts=True, WF=wf(5,5,5,5)))
    open("v7b.s", "w").write(gen(WF=wf(6,6,5,8)))
```

```python
import sys
from asmlib import Asm
KNAME = "recurrent_scan__mha_block_cached__moe_arch_mod__decode_kernel"
HEADER = open("recurrent_scan__mha_block_cached__moe_arch_mod__decode.s.ref").read().split("; Override launch")[0]

WS_FL = 0x0c0000
WS_R, WS_ML, WS_PG, WS_OP, WS_Y, WS_F, WS_END = 0x0, 0x100000, 0x108000, 0x110000, 0x200000, 0x280000, 0x300000
OOB = 0x40000000
L_PART, L_Q, L_O, L_CNT, L_LN, L_XP, L_END = 0, 12288, 13056, 21248, 21312, 21344, 21664
LOG2E = 0x3fb8aa3b
SCALE = 0x3d93cd3a

def gen(D=16, ts=False, kvflags=" nt", GATE_EARLY=2, CATCH=3, PRE=0, WF=None, CPF=True, ADAPT=None, TH=0, TSL=2, DBGT=False):
    a = Asm()
    A = a
    a.raw(HEADER.rstrip("\n"))
    a.raw(f"; @launch grid=(256,1,1) block=(512,1,1) lds={L_END}")
    a.raw('.amdgcn_target "amdgcn-amd-amdhsa--gfx950"')
    a.raw(".text")
    a.raw(f".globl {KNAME}")
    a.raw(".p2align 8")
    a.raw(f".type {KNAME},@function")
    a.raw(f"{KNAME}:")
    RB = 256 - 12 * D
    W = WF(0)
    assert RB >= 64
    def lreg(j): return RB + 4 * (j % (3 * D))
    def stamp_at(k):
        if ts:
            A(f"s_memrealtime s[{84+2*k}:{85+2*k}]")
    def spin(label):
        a.label(label)
        A("s_sub_u32 s75, s75, 1")
        A("s_cbranch_scc1 L_end")
    def red32(r, t, op="v_add_f32"):
        A(f"""
        v_mov_b32 v{t}, v{r}
        v_permlane16_swap_b32 v{r}, v{t}
        {op} v{r}, v{r}, v{t}
        {op}_dpp v{r}, v{r}, v{r} row_ror:8 row_mask:0xf bank_mask:0xf
        {op}_dpp v{r}, v{r}, v{r} row_ror:4 row_mask:0xf bank_mask:0xf
        {op}_dpp v{r}, v{r}, v{r} row_ror:2 row_mask:0xf bank_mask:0xf
        {op}_dpp v{r}, v{r}, v{r} row_ror:1 row_mask:0xf bank_mask:0xf
        """)
    def red64(r, t, op="v_add_f32"):
        A(f"""
        v_mov_b32 v{t}, v{r}
        v_permlane32_swap_b32 v{r}, v{t}
        {op} v{r}, v{r}, v{t}
        """)
        red32(r, t, op)
    def rbf(d, s):
        A(f"v_cvt_pk_bf16_f32 v{d}, v{s}, v{s}")
        A(f"v_and_b32 v{d}, 0xffff0000, v{d}")
    def oct_red8(r):
        for k in range(4): A(f"v_permlane32_swap_b32 v{r+k}, v{r+4+k}")
        for k in range(4): A(f"v_add_f32 v{r+k}, v{r+k}, v{r+4+k}")
        for k in range(2): A(f"v_permlane16_swap_b32 v{r+k}, v{r+2+k}")
        for k in range(2): A(f"v_add_f32 v{r+k}, v{r+k}, v{r+2+k}")
        A(f"v_add_f32_dpp v{r+2}, v{r}, v{r} row_ror:8 row_mask:0xf bank_mask:0x3")
        A(f"v_add_f32_dpp v{r+3}, v{r+1}, v{r+1} row_ror:8 row_mask:0xf bank_mask:0xc")
        A(f"v_cndmask_b32 v{r}, v{r+2}, v{r+3}, s[12:13]")
    def obcast(d, s, i):
        A(f"v_mov_b32_dpp v{d}, v{s} row_newbcast:{i} row_mask:0xf bank_mask:0x3")
        A(f"v_mov_b32_dpp v{d}, v{s} row_newbcast:{8+i} row_mask:0xf bank_mask:0xc")
    def emit_load(j):
        ten, g, t = j // 96, (j % 96) // 3, j % 3
        srd = "s[36:39]" if ten == 0 else "s[40:43]"
        if t == 0 and g % 2 == 0:
            A(f"s_mov_b32 s76, {g*3072}")
        r = lreg(j)
        A(f"buffer_load_dwordx4 v[{r}:{r+3}], v1, {srd}, s76 offen offset:{(g%2)*3072 + t*128}{kvflags}")
    lbl = [0]
    def win_wait(j):
        Wj = WF(j)
        A(f"s_waitcnt vmcnt({Wj-1})")
        if ADAPT is not None and ADAPT(j) < Wj:
            lbl[0] += 1
            A(f"s_cbranch_vccz L_aw{lbl[0]}")
            A(f"s_waitcnt vmcnt({ADAPT(j)-1})")
            a.lines.append(f"L_aw{lbl[0]}:")
        return Wj
    def checkpoint(j):
        if ADAPT is None or j % 6 != 0 or j < 12: return
        A(f"""
        s_waitcnt lgkmcnt(0)
        v_cmp_ne_u32 vcc, 0, v60
        v_add_u32 v61, 1, v61
        ds_write_b32 v57, v61 offset:{L_CNT+48}
        ds_read_b32 v60, v58 offset:{L_CNT+8-1}
        """)

    A("s_cmp_ge_u32 s2, 256")
    A("s_cbranch_scc1 L_end")
    A("s_load_dwordx16 s[8:23], s[0:1], 0")
    A("s_load_dwordx8 s[24:31], s[0:1], 64")
    A("s_load_dwordx2 s[32:33], s[0:1], 96")
    stamp_at(0)
    A(f"""
    v_lshrrev_b32 v2, 6, v0
    v_and_b32 v0, 63, v0
    v_readfirstlane_b32 s3, v2
    s_lshr_b32 s4, s2, 3
    s_and_b32 s5, s2, 7
    v_lshrrev_b32 v2, 3, v0
    v_mul_u32_u24 v2, 384, v2
    v_and_b32 v3, 7, v0
    v_lshl_add_u32 v1, v3, 4, v2
    s_lshr_b32 s6, s3, 2
    s_and_b32 s7, s3, 3
    s_movk_i32 s50, 2560
    s_mov_b32 s51, 0x20000
    s_cmp_eq_u32 s6, 0
    s_cbranch_scc1 L_flood
    """)
    def common_sgprs():
        A(f"""
        s_lshl_b32 s68, s6, 5
        s_add_u32 s68, s68, s4
        s_lshl_b32 s68, s68, 5
        s_lshl_b32 s73, s5, 2
        s_add_u32 s68, s68, s73
        s_add_u32 s68, s68, s7
        s_mul_i32 s68, s68, 98304
        s_mov_b32 s38, 98304
        s_mov_b32 s39, 0x20000
        s_lshl_b32 s72, s4, 1
        s_add_u32 s72, s72, s6
        s_lshl_b32 s72, s72, 8
        s_add_u32 s72, s72, {WS_ML}
        s_mov_b32 s75, 0x40000
        s_mov_b32 s46, {WS_END}
        s_mov_b32 s47, 0x20000
        """)
    def srd_rest():
        A(f"""
        s_add_u32 s40, s12, s68
        s_addc_u32 s41, s13, 0
        s_mov_b32 s42, 98304
        s_mov_b32 s43, 0x20000
        s_mov_b64 s[56:57], s[26:27]
        s_mov_b32 s58, 1966080
        s_mov_b32 s59, 0x20000
        s_mov_b64 s[60:61], s[20:21]
        s_movk_i32 s62, 1280
        s_mov_b32 s63, 0x20000
        s_mov_b64 s[64:65], s[28:29]
        s_movk_i32 s66, 2560
        s_mov_b32 s67, 0x20000
        s_mov_b32 s82, 0x05040100
        s_mov_b32 s83, 0x07060302
        s_lshl_b32 s73, s5, 2
        s_add_u32 s73, s73, s7
        s_lshl_b32 s73, s73, 3
        s_add_u32 s73, s73, s72
        v_mov_b32 v56, {OOB}
        v_writelane_b32 v56, s73, 0
        s_lshl_b32 s34, s7, 2
        v_mov_b32 v57, s34
        v_mov_b32 v58, 1
        v_mov_b32 v60, 0
        s_lshl_b32 s34, s6, 5
        v_mov_b32 v61, s34
        s_mov_b64 vcc, 0
        """)
    WB, PT, XV = 64, 104, 112
    A(f"""
    s_mul_i32 s69, s5, 80
    s_mul_i32 s70, s7, 20
    s_add_u32 s69, s69, s70
    s_mul_i32 s70, s69, 12288
    s_mul_i32 s71, s4, 384
    s_add_u32 s70, s70, s71
    v_mul_u32_u24 v58, 40, v0
    v_lshrrev_b32 v3, 5, v0
    v_mul_u32_u24 v59, 1280, v3
    v_and_b32 v2, 31, v0
    v_add_u32 v4, s69, v2
    v_lshl_add_u32 v59, v4, 1, v59
    v_mul_u32_u24 v3, 122880, v3
    v_lshl_add_u32 v3, v2, 4, v3
    v_mov_b32 v4, {OOB}
    v_cmp_gt_u32 vcc, 24, v2
    v_cndmask_b32 v62, v4, v3, vcc
    s_mov_b32 s54, 7864320
    s_mov_b32 s55, 0x20000
    s_waitcnt lgkmcnt(0)
    s_mov_b64 s[48:49], s[8:9]
    s_mov_b64 s[52:53], s[14:15]
    buffer_load_dwordx4 v[16:19], v58, s[48:51], 0 offen
    buffer_load_dwordx4 v[20:23], v58, s[48:51], 0 offen offset:16
    buffer_load_dwordx2 v[24:25], v58, s[48:51], 0 offen offset:32
    buffer_load_ushort v26, v59, s[48:51], 0 offen
    """)
    for j in range(10):
        A(f"buffer_load_dwordx4 v[{WB+4*j}:{WB+4*j+3}], v62, s[52:55], s70 offen nt")
        if j < 9:
            A("s_add_u32 s70, s70, 12288")
    A(f"""
    s_mov_b64 exec, 0xffff
    v_lshlrev_b32 v2, 2, v0
    v_mov_b32 v4, 0
    ds_write_b32 v2, v4 offset:{L_CNT}
    s_mov_b64 exec, -1
    s_waitcnt lgkmcnt(0)
    s_barrier
    """)
    common_sgprs()
    A("""
    s_add_u32 s36, s10, s68
    s_addc_u32 s37, s11, 0
    s_mov_b64 s[44:45], s[32:33]
    s_mov_b64 s[78:79], s[22:23]
    s_mov_b64 s[80:81], s[24:25]
    """)
    srd_rest()
    stamp_at(7)
    A("s_waitcnt vmcnt(10)")
    for k in range(10):
        A(f"v_lshlrev_b32 v{32+2*k}, 16, v{16+k}")
        A(f"v_and_b32 v{33+2*k}, 0xffff0000, v{16+k}")
    A("v_add_f32 v14, v32, v33")
    A("v_add_f32 v15, v34, v35")
    for k in range(4, 20, 2):
        A(f"v_add_f32 v14, v14, v{32+k}")
        A(f"v_add_f32 v15, v15, v{33+k}")
    A("v_add_f32 v14, v14, v15")
    red32(14, 15)
    A("v_mul_f32 v14, 0x3acccccd, v14")
    for k in range(20):
        A(f"v_sub_f32 v{32+k}, v{32+k}, v14")
    A("v_mul_f32 v12, v32, v32")
    A("v_mul_f32 v13, v33, v33")
    for k in range(2, 20, 2):
        A(f"v_fmac_f32 v12, v{32+k}, v{32+k}")
        A(f"v_fmac_f32 v13, v{33+k}, v{33+k}")
    A("v_add_f32 v12, v12, v13")
    red32(12, 13)
    A("v_mul_f32 v12, 0x3acccccd, v12")
    rbf(14, 14)
    rbf(12, 12)
    A("v_add_f32 v12, 0x3727c5ac, v12")
    rbf(12, 12)
    A("v_sqrt_f32 v12, v12")
    rbf(12, 12)
    A("v_rcp_f32 v13, v12")
    A("v_lshlrev_b32 v26, 16, v26")
    A("v_sub_f32 v26, v26, v14")
    rbf(26, 26)
    A("""
    v_mul_f32 v15, v26, v13
    v_fma_f32 v11, -v15, v12, v26
    v_fmac_f32 v15, v11, v13
    v_mov_b32_dpp v11, v15 quad_perm:[1,0,3,2] row_mask:0xf bank_mask:0xf
    v_cvt_pk_bf16_f32 v15, v15, v11
    """)
    A(f"""
    v_lshrrev_b32 v2, 5, v0
    v_lshlrev_b32 v3, 4, v2
    ds_write_b96 v3, v[12:14] offset:{L_LN}
    v_mul_u32_u24 v2, 160, v2
    v_and_b32 v3, 31, v0
    v_lshl_add_u32 v2, v3, 1, v2
    s_mul_i32 s34, s7, 40
    v_add_u32 v2, s34, v2
    s_mov_b32 exec_lo, 0x55555
    s_mov_b32 exec_hi, 0x55555
    ds_write_b32 v2, v15 offset:{L_XP}
    s_mov_b64 exec, -1
    v_lshrrev_b32 v2, 5, v0
    v_mul_u32_u24 v2, 20, v2
    v_add_u32 v2, s34, v2
    """)
    for b in range(2):
        for p in range(5):
            A(f"ds_read_b32 v{XV+5*b+p}, v2 offset:{L_XP+160*b+4*p}")
    for k in range(16):
        A(f"v_mov_b32 v{32+k}, 0")
    for p in range(5):
        A(f"s_waitcnt vmcnt({8-2*p})")
        r0, r1 = WB + 8 * p, WB + 8 * p + 4
        for k in range(4):
            A(f"v_perm_b32 v{PT+2*k}, v{r1+k}, v{r0+k}, s82")
            A(f"v_perm_b32 v{PT+2*k+1}, v{r1+k}, v{r0+k}, s83")
        if p == 0:
            A("s_waitcnt lgkmcnt(0)")
        for b in range(2):
            for c in range(8):
                A(f"v_dot2c_f32_bf16 v{32+8*b+c}, v{XV+5*b+p}, v{PT+c}")
    A(f"""
    s_mul_i32 s34, s7, 3072
    v_lshrrev_b32 v2, 5, v0
    v_mul_u32_u24 v2, 1536, v2
    v_and_b32 v3, 31, v0
    v_lshl_add_u32 v2, v3, 5, v2
    v_add_u32 v2, s34, v2
    v_mov_b32 v3, {L_CNT+16}
    s_mov_b32 exec_lo, 0xffffff
    s_mov_b32 exec_hi, 0xffffff
    ds_write_b128 v2, v[32:35] offset:{L_PART}
    ds_write_b128 v2, v[36:39] offset:{L_PART+16}
    ds_write_b128 v2, v[40:43] offset:{L_PART+768}
    ds_write_b128 v2, v[44:47] offset:{L_PART+784}
    s_mov_b64 exec, 1
    ds_add_u32 v3, v58
    s_mov_b64 exec, -1
    s_cmp_eq_u32 s3, 7
    s_cbranch_scc1 L_qx
    """)
    stamp_at(1)
    A("""
    s_waitcnt lgkmcnt(0)
    s_barrier
    s_cmp_eq_u32 s3, 4
    s_cbranch_scc1 L_ffn
    s_cmp_eq_u32 s3, 5
    s_cbranch_scc1 L_gate
    """)
    a.label("L_qx", pad=False)
    GB, G2 = 64, 96
    A(f"""
    s_sub_u32 s18, 7, s3
    s_mul_i32 s19, s18, 768
    v_lshl_add_u32 v2, v0, 4, s19
    s_lshl_b32 s35, s4, 3
    s_mul_i32 s34, s4, 18432
    s_add_u32 s34, s34, s19
    s_add_u32 s78, s32, s34
    s_addc_u32 s79, s33, 0
    """)
    spin("L_pwait")
    A(f"""
    ds_read_b32 v4, v3
    s_waitcnt lgkmcnt(0)
    v_readfirstlane_b32 s34, v4
    s_cmp_eq_u32 s34, 5
    s_cbranch_scc0 L_pwait
    s_mov_b32 exec_hi, 0xffff
    """)
    stamp_at(1)
    for w in range(8):
        A(f"ds_read_b128 v[{GB+4*w}:{GB+4*w+3}], v2 offset:{L_PART+w*1536}")
    A("s_mul_i32 s34, s2, 2304")
    A("s_waitcnt lgkmcnt(0)")
    for st in (16, 8, 4):
        for k in range(st):
            A(f"v_add_f32 v{GB+k}, v{GB+k}, v{GB+st+k}")
    A(f"buffer_store_dwordx4 v[{GB}:{GB+3}], v2, s[44:47], s34 offen sc1")
    stamp_at(2)
    A(f"""
    s_mul_i32 s19, s18, 384
    v_lshl_add_u32 v4, v0, 3, s19
    """)
    A(f"""
    s_cmp_eq_u32 s18, 1
    s_cbranch_scc1 L_tpoll
    ds_read_b64 v[6:7], v3 offset:8
    s_lshl_b32 s34, s4, 10
    s_add_u32 s34, s34, {WS_FL}
    s_add_u32 s26, s32, s34
    s_addc_u32 s27, s33, 0
    s_waitcnt lgkmcnt(0)
    v_readfirstlane_b32 s24, v6
    v_readfirstlane_b32 s25, v7
    """)
    spin("L_qpoll")
    FS = [8, 10, 12, 14, 16, 20, 22, 68]
    for xp in range(8):
        A(f"s_load_dwordx2 s[{FS[xp]}:{FS[xp]+1}], s[26:27], {xp*128} glc")
    A("s_waitcnt lgkmcnt(0)")
    for xp in range(8):
        A(f"s_xor_b64 s[{FS[xp]}:{FS[xp]+1}], s[{FS[xp]}:{FS[xp]+1}], s[24:25]")
    for xp in range(1, 8):
        A(f"s_or_b64 s[8:9], s[8:9], s[{FS[xp]}:{FS[xp]+1}]")
    A("""
    s_cbranch_scc1 L_qpoll
    s_branch L_tpoll
    """)
    a.label("L_tretry", pad=False)
    A("""
    s_cmp_eq_u32 s18, 0
    s_cbranch_scc1 L_tsl
    s_sleep 32
    """)
    a.label("L_tsl", pad=False)
    A(f"s_sleep {TSL}")
    spin("L_tpoll")
    for xp in range(8):
        A(f"s_load_dword s{8+xp}, s[78:79], {xp*2304+764} glc")
    A("s_waitcnt lgkmcnt(0)")
    for xp in range(1, 8):
        A(f"s_max_u32 s8, s8, s{8+xp}")
    A("""
    s_cmp_eq_u32 s8, -1
    s_cbranch_scc1 L_tretry
    """)
    a.label("L_gath", pad=False)
    A("s_mul_i32 s34, s4, 18432")
    for xp in range(8):
        A(f"buffer_load_dwordx4 v[{G2+4*xp}:{G2+4*xp+3}], v2, s[44:47], s34 offen sc1")
        if xp < 7:
            A("s_add_u32 s34, s34, 2304")
    A("s_waitcnt vmcnt(0)")
    A(f"v_max_u32 v12, v{G2}, v{G2+1}")
    A(f"v_max_u32 v13, v{G2+2}, v{G2+3}")
    for k in range(4, 32, 4):
        A(f"v_max3_u32 v12, v12, v{G2+k}, v{G2+k+1}")
        A(f"v_max3_u32 v13, v13, v{G2+k+2}, v{G2+k+3}")
    A("""
    v_max_u32 v12, v12, v13
    v_cmp_eq_u32 vcc, -1, v12
    s_cbranch_vccnz L_tretry
    """)
    stamp_at(3)
    for st in (16, 8, 4):
        for k in range(st):
            A(f"v_add_f32 v{G2+k}, v{G2+k}, v{G2+st+k}")
    A(f"""
    v_cvt_pk_bf16_f32 v{G2}, v{G2}, v{G2+1}
    v_cvt_pk_bf16_f32 v{G2+1}, v{G2+2}, v{G2+3}
    ds_write_b64 v4, v[{G2}:{G2+1}] offset:{L_Q}
    s_mov_b32 exec_hi, -1
    s_cmp_eq_u32 s3, 7
    s_cbranch_scc0 L_q1done
    s_waitcnt lgkmcnt(0)
    s_barrier
    s_branch L_gate
    """)
    a.label("L_q1done", pad=False)
    A(f"""
    v_lshlrev_b32 v2, 2, v0
    s_mov_b64 exec, 0xf
    ds_add_u32 v2, v58 offset:{L_CNT+32}
    s_mov_b64 exec, -1
    s_branch L_gate
    """)
    a.label("L_ffn", pad=False)
    FW, FX = 64, 152
    A(f"""
    s_mul_i32 s34, s5, 245760
    s_mul_i32 s35, s4, 96
    s_add_u32 s34, s34, s35
    s_add_u32 s78, s78, s34
    s_addc_u32 s79, s79, 0
    s_add_u32 s80, s80, s34
    s_addc_u32 s81, s81, 0
    s_sub_u32 s80, s80, 96
    s_subb_u32 s81, s81, 0
    v_lshrrev_b32 v4, 4, v0
    v_and_b32 v5, 15, v0
    v_mul_u32_u24 v6, 61440, v4
    v_lshl_add_u32 v6, v5, 4, v6
    v_mov_b32 v7, 0
    v_mov_b32 v2, s80
    v_mov_b32 v3, s81
    s_mov_b32 exec_lo, 0x003f003f
    s_mov_b32 exec_hi, 0x003f003f
    v_mov_b32 v2, s78
    v_mov_b32 v3, s79
    s_mov_b64 exec, -1
    v_mul_u32_u24 v8, 40, v4
    v_mov_b32 v10, 3072
    v_mov_b32 v11, 0
    """)
    for b in range(2):
        for p in range(10):
            A(f"ds_read_b32 v{FX+10*b+p}, v8 offset:{L_XP+160*b+4*p}")
    A("""
    s_mov_b32 exec_lo, 0x0fff0fff
    s_mov_b32 exec_hi, 0x0fff0fff
    v_lshl_add_u64 v[2:3], v[6:7], 0, v[2:3]
    """)
    for j in range(20):
        if j >= 3:
            A("s_waitcnt vmcnt(2)")
        A(f"global_load_dwordx4 v[{FW+4*j}:{FW+4*j+3}], v[2:3], off nt")
        if j < 19:
            A("v_lshl_add_u64 v[2:3], v[10:11], 0, v[2:3]")
    A("s_mov_b64 exec, -1")
    for k in range(16):
        A(f"v_mov_b32 v{32+k}, 0")
    A("s_waitcnt vmcnt(0) lgkmcnt(0)")
    for p in range(10):
        r0, r1 = FW + 8 * p, FW + 8 * p + 4
        for k in range(4):
            A(f"v_perm_b32 v{144+2*k}, v{r1+k}, v{r0+k}, s82")
            A(f"v_perm_b32 v{144+2*k+1}, v{r1+k}, v{r0+k}, s83")
        for b in range(2):
            for c in range(8):
                A(f"v_dot2c_f32_bf16 v{32+8*b+c}, v{FX+10*b+p}, v{144+c}")
    for k in range(8): A(f"v_permlane32_swap_b32 v{32+k}, v{40+k}")
    for k in range(8): A(f"v_add_f32 v{32+k}, v{32+k}, v{40+k}")
    for k in range(4): A(f"v_permlane16_swap_b32 v{32+k}, v{36+k}")
    for k in range(4): A(f"v_add_f32 v{32+k}, v{32+k}, v{36+k}")
    A(f"""
    v_lshrrev_b32 v2, 5, v0
    v_mul_u32_u24 v2, 384, v2
    v_lshl_add_u32 v2, v5, 5, v2
    v_and_b32 v3, 16, v0
    v_add_u32 v2, v2, v3
    s_mul_i32 s34, s2, 2304
    s_mov_b32 exec_lo, 0x0fff0fff
    s_mov_b32 exec_hi, 0x0fff0fff
    buffer_store_dwordx4 v[32:35], v2, s[44:47], s34 offen offset:1536 sc1
    s_mov_b64 exec, -1
    v_lshrrev_b32 v3, 3, v0
    v_mul_u32_u24 v3, 24, v3
    v_bfe_u32 v4, v0, 1, 2
    v_mul_u32_u24 v4, 192, v4
    v_and_b32 v5, 1, v0
    v_mul_u32_u24 v5, 12, v5
    v_add3_u32 v3, v3, v4, v5
    """)
    FG = 64
    spin("L_fgath")
    A("s_sleep 32")
    A("s_mul_i32 s34, s4, 18432")
    for xp in range(8):
        A(f"buffer_load_dwordx3 v[{FG+4*xp}:{FG+4*xp+2}], v3, s[44:47], s34 offen offset:1536 sc1")
        if xp < 7:
            A("s_add_u32 s34, s34, 2304")
    A("s_waitcnt vmcnt(0)")
    A(f"v_max3_u32 v12, v{FG}, v{FG+1}, v{FG+2}")
    for xp in range(1, 8):
        A(f"v_max3_u32 v13, v{FG+4*xp}, v{FG+4*xp+1}, v{FG+4*xp+2}")
        A("v_max_u32 v12, v12, v13")
    A("""
    v_cmp_eq_u32 vcc, -1, v12
    s_cbranch_vccnz L_fgath
    """)
    for st in (16, 8, 4):
        for k in range(st):
            if k % 4 != 3:
                A(f"v_add_f32 v{FG+k}, v{FG+k}, v{FG+st+k}")
    for r in (FG, FG + 1, FG + 2):
        rbf(r, r)
        A(f"""
        v_mov_b32_dpp v12, v{r} quad_perm:[2,3,0,1] row_mask:0xf bank_mask:0xf
        v_mul_f32 v13, 0xbfb8aa3b, v{r}
        v_exp_f32 v13, v13
        v_add_f32 v13, 1.0, v13
        v_rcp_f32 v13, v13
        v_mul_f32 v13, v{r}, v13
        """)
        rbf(13, 13)
        A(f"""
        v_mul_f32 v{r}, v13, v12
        v_mov_b32_dpp v12, v{r} quad_perm:[1,0,3,2] row_mask:0xf bank_mask:0xf
        v_cvt_pk_bf16_f32 v{r}, v{r}, v12
        """)
    for b in range(2):
        for j in range(3):
            obcast(16 + 3 * b + j, FG + j, 4 * b)
    A(f"""
    v_lshrrev_b32 v4, 3, v0
    v_mul_u32_u24 v2, 7680, v4
    v_and_b32 v5, 7, v0
    v_lshl_add_u32 v2, v5, 4, v2
    v_lshlrev_b32 v3, 2, v4
    v_lshl_add_u32 v3, v5, 5, v3
    s_mov_b32 s12, 0xff00ff00
    s_mov_b32 s13, 0xff00ff00
    s_mov_b32 s18, s5
    """)
    DB, DP = 96, 128
    a.label("L_ftask")
    A(f"""
    s_mul_i32 s34, s4, 61440
    s_lshl_b32 s35, s18, 7
    s_add_u32 s34, s34, s35
    s_add_u32 s35, s34, 3840
    """)
    for j in range(6):
        if j >= 2:
            A("s_waitcnt vmcnt(1)")
        A(f"buffer_load_dwordx4 v[{DB+4*j}:{DB+4*j+3}], v2, s[56:59], s{34 if j < 3 else 35} offen offset:{(j%3)*1280} nt")
    for k in range(16):
        A(f"v_mov_b32 v{32+k}, 0")
    A(f"""
    s_lshl_b32 s34, s18, 13
    s_lshl_b32 s35, s4, 8
    s_add_u32 s34, s34, s35
    s_add_u32 s34, s34, {WS_F}
    s_add_u32 s35, s34, 81920
    s_waitcnt vmcnt(0)
    """)
    for j in range(3):
        r0, r1 = DB + 4 * j, DB + 4 * (j + 3)
        for k in range(4):
            A(f"v_perm_b32 v{DP+8*j+2*k}, v{r1+k}, v{r0+k}, s82")
            A(f"v_perm_b32 v{DP+8*j+2*k+1}, v{r1+k}, v{r0+k}, s83")
    for j in range(3):
        for b in range(2):
            for c in range(8):
                A(f"v_dot2c_f32_bf16 v{32+8*b+c}, v{16+3*b+j}, v{DP+8*j+c}")
    oct_red8(32)
    oct_red8(40)
    A("""
    buffer_store_dword v32, v3, s[44:47], s34 offen sc1
    buffer_store_dword v40, v3, s[44:47], s35 offen sc1
    s_add_u32 s18, s18, 8
    s_cmp_lt_u32 s18, 10
    s_cbranch_scc1 L_ftask
    """)
    stamp_at(2)
    A("s_branch L_gate")

    def ctrl_step(sb):
        A(f"""
        v_mov_b32 v2, 0
        ds_read_b128 v[4:7], v2 offset:{L_CNT+48}
        s_load_dwordx16 s[{sb}:{sb+15}], s[78:79], 0 glc
        s_waitcnt lgkmcnt(0)
        v_add_u32 v4, v4, v5
        v_add3_u32 v4, v4, v6, v7
        buffer_store_dword v4, v63, s[44:47], 0 offen sc1
        s_mov_b32 m0, s74
        s_nop 0
        s_movrels_b32 s34, s{sb}
        """)
        for k in range(1, 16):
            A(f"s_add_u32 s{sb}, s{sb}, s{sb+k}")
        A(f"""
        s_lshl_b32 s34, s34, 4
        s_add_u32 s{sb}, s{sb}, {TH}
        s_cmp_gt_i32 s34, s{sb}
        s_cselect_b32 s34, 1, 0
        v_mov_b32 v3, s34
        ds_write_b32 v2, v3 offset:{L_CNT+8}
        """)
    def ctrl_setup():
        A(f"""
        s_and_b32 s74, s2, 15
        s_lshr_b32 s34, s2, 4
        s_lshl_b32 s34, s34, 6
        s_add_u32 s34, s34, {WS_PG}
        s_add_u32 s78, s32, s34
        s_addc_u32 s79, s33, 0
        s_lshl_b32 s34, s2, 2
        s_add_u32 s34, s34, {WS_PG}
        v_mov_b32 v63, {OOB}
        v_writelane_b32 v63, s34, 0
        """)
    a.label("L_flood", pad=False)
    A("""
    s_or_b32 s34, s2, s3
    s_cmp_eq_u32 s34, 2
    s_cbranch_scc0 L_nonon
    s_cmp_eq_u32 s2, 0
    s_cbranch_scc0 L_nonon
    s_memrealtime s[80:81]
    v_mov_b32 v2, 0
    s_waitcnt lgkmcnt(0)
    s_or_b32 s80, s80, 1
    s_bitset1_b32 s81, 31
    v_mov_b32 v4, s80
    v_mov_b32 v5, s81
    s_mov_b64 exec, 1
    global_store_dwordx2 v2, v[4:5], s[30:31] sc1
    s_mov_b64 exec, -1
    """)
    a.label("L_nonon", pad=False)
    common_sgprs()
    if CPF:
        A("""
        s_cmp_eq_u32 s3, 1
        s_cbranch_scc0 L_nocpf
        s_getpc_b64 s[78:79]
        """)
        a.label("L_pcref", pad=False)
        A(f"""
        s_sub_u32 s78, s78, L_pcref-{KNAME}
        s_subb_u32 s79, s79, 0
        s_min_u32 s34, s4, CPFMAX
        s_lshl_b32 s34, s34, 10
        v_lshl_add_u32 v2, v0, 4, s34
        global_load_dwordx4 v[16:19], v2, s[78:79]
        """)
        a.label("L_nocpf", pad=False)
    A("""
    s_cmp_eq_u32 s3, 0
    s_cbranch_scc0 L_nores0
    """)
    A(f"""
    v_lshlrev_b32 v57, 4, v0
    v_mov_b32 v27, {OOB}
    v_cmp_gt_u32 vcc, 48, v0
    v_cndmask_b32 v58, v27, v57, vcc
    v_mov_b32 v28, -1
    v_mov_b32 v29, -1
    v_mov_b32 v30, -1
    v_mov_b32 v31, -1
    s_mul_i32 s69, s2, 2304
    v_lshrrev_b32 v2, 4, v0
    v_and_b32 v3, 15, v0
    v_lshlrev_b32 v3, 4, v3
    v_lshl_add_u32 v59, v2, 11, v3
    v_add_u32 v60, 8192, v59
    v_cmp_gt_u32 vcc, 32, v0
    v_cndmask_b32 v60, v27, v60, vcc
    s_mul_i32 s70, s4, 12288
    s_lshl_b32 s71, s5, 8
    s_add_u32 s70, s70, s71
    s_add_u32 s70, s70, {WS_OP}
    s_lshl_b32 s71, s5, 2
    v_add_u32 v4, s71, v2
    v_mul_u32_u24 v5, 43, v4
    v_lshrrev_b32 v5, 7, v5
    v_mul_u32_u24 v6, 3, v5
    v_sub_u32 v6, v4, v6
    v_mul_u32_u24 v5, 24576, v5
    v_lshl_add_u32 v5, v6, 8, v5
    v_add_u32 v61, v5, v3
    v_cmp_gt_u32 vcc, 30, v4
    v_cndmask_b32 v61, v27, v61, vcc
    s_mul_i32 s77, s4, 768
    s_add_u32 s77, s77, {WS_Y}
    s_add_u32 s78, s77, 245760
    v_and_b32 v4, 1, v2
    v_mul_u32_u24 v4, 81920, v4
    v_lshrrev_b32 v5, 1, v2
    v_lshl_add_u32 v5, v5, 3, s5
    v_lshl_add_u32 v4, v5, 13, v4
    v_add_u32 v62, v4, v3
    v_cmp_gt_u32 vcc, 10, v5
    v_cndmask_b32 v62, v27, v62, vcc
    s_lshl_b32 s79, s4, 8
    s_add_u32 s79, s79, {WS_F}
    v_lshrrev_b32 v2, 1, v0
    v_lshlrev_b32 v2, 8, v2
    v_and_b32 v3, 1, v0
    v_lshl_add_u32 v63, v3, 4, v2
    v_cmp_gt_u32 vcc, 4, v0
    v_cndmask_b32 v63, v27, v63, vcc
    s_lshl_b32 s71, s5, 5
    s_add_u32 s71, s71, s72
    s_lshl_b32 s34, s2, 2
    s_add_u32 s34, s34, {WS_PG}
    v_writelane_b32 v27, s34, 0
    v_mov_b32 v3, s2
    v_mov_b32 v4, 1
    v_mov_b32 v5, {L_CNT+16}
    s_waitcnt lgkmcnt(0)
    s_mov_b64 s[44:45], s[32:33]
    """)
    for k in range(3):
        A(f"buffer_store_dwordx4 v[28:31], v58, s[44:47], s69 offen offset:{768*k} sc1")
    A("""
    buffer_store_dwordx4 v[28:31], v59, s[44:47], s70 offen sc1
    buffer_store_dwordx4 v[28:31], v60, s[44:47], s70 offen sc1
    buffer_store_dwordx4 v[28:31], v61, s[44:47], s77 offen sc1
    buffer_store_dwordx4 v[28:31], v61, s[44:47], s78 offen sc1
    buffer_store_dwordx4 v[28:31], v62, s[44:47], s79 offen sc1
    buffer_store_dwordx4 v[28:31], v63, s[44:47], s71 offen sc1
    """)
    if ADAPT is not None:
        A("buffer_store_dword v4, v27, s[44:47], 0 offen sc1")
    a.label("L_nores0", pad=False)
    A("""
    s_waitcnt lgkmcnt(0)
    s_add_u32 s36, s10, s68
    s_addc_u32 s37, s11, 0
    s_mov_b64 s[44:45], s[32:33]
    s_mov_b64 s[48:49], s[8:9]
    """)
    for j in range(PRE):
        emit_load(j)
    A("""
    s_mov_b64 s[52:53], s[16:17]
    s_mov_b32 s54, 7864320
    s_mov_b32 s55, 0x20000
    """)
    srd_rest()
    A("s_barrier")
    stamp_at(3)
    for j in range(PRE, W):
        emit_load(j)
    A("""
    s_cmp_eq_u32 s3, 0
    s_cbranch_scc0 L_pre
    """)
    A(f"""
    v_mov_b32 v2, 0
    v_lshlrev_b32 v3, 4, v0
    s_lshl_b32 s35, s2, 7
    s_add_u32 s35, s35, {WS_FL}
    """)
    spin("L_npoll")
    A(f"""
    global_load_dwordx2 v[28:29], v2, s[30:31] sc1
    s_waitcnt vmcnt(0)
    v_min_u32 v30, v28, v29
    v_cmp_eq_u32 vcc, 0, v30
    s_cbranch_vccnz L_npoll
    v_mov_b32 v30, v28
    v_mov_b32 v31, v29
    s_mov_b64 exec, 0xff
    buffer_store_dwordx4 v[28:31], v3, s[44:47], s35 offen sc1
    s_mov_b64 exec, 1
    ds_write_b64 v5, v[28:29] offset:8
    ds_add_u32 v5, v4
    s_mov_b64 exec, -1
    """)
    stamp_at(1)
    A("s_branch L_pre")
    a.label("L_gate")
    if ADAPT is not None:
        ctrl_setup()
    spin("L_gwait")
    if ADAPT is not None:
        A("""
        s_cmp_eq_u32 s3, 5
        s_cbranch_scc0 L_gw2
        """)
        ctrl_step(8)
        a.label("L_gw2", pad=False)
    A(f"""
    s_sleep 2
    ds_read_b32 v4, v57 offset:{L_CNT+32}
    s_waitcnt lgkmcnt(0)
    v_readfirstlane_b32 s34, v4
    s_cmp_eq_u32 s34, 2
    s_cbranch_scc0 L_gwait
    s_mov_b64 vcc, 0
    """)
    for j in range(W):
        emit_load(j)
    a.label("L_pre", pad=False)
    for j in range(W, 3 * D):
        checkpoint(j)
        win_wait(j)
        emit_load(j)
    A("""
    s_cmp_eq_u32 s6, 0
    s_cbranch_scc0 L_main
    """)
    if ts: A("s_memrealtime s[88:89]")
    A("""
    s_waitcnt lgkmcnt(0)
    s_barrier
    """)
    a.label("L_main")
    stamp_at(4)
    A(f"""
    v_and_b32 v2, 7, v0
    v_lshlrev_b32 v2, 4, v2
    s_mul_i32 s34, s6, 384
    v_add_u32 v2, s34, v2
    ds_read_b128 v[4:7], v2 offset:{L_Q}
    ds_read_b128 v[8:11], v2 offset:{L_Q+128}
    ds_read_b128 v[12:15], v2 offset:{L_Q+256}
    s_mov_b32 s8, 0xaaaaaaaa
    s_mov_b32 s9, 0xaaaaaaaa
    s_mov_b32 s10, 0xcccccccc
    s_mov_b32 s11, 0xcccccccc
    s_mov_b32 s12, 0xff00ff00
    s_mov_b32 s13, 0xff00ff00
    v_and_b32 v3, 31, v0
    v_lshl_add_u32 v59, v3, 3, s72
    s_waitcnt lgkmcnt(0)
    """)
    Q = list(range(3 * D - WF(3*D-1), 3 * D))
    NL = 192
    issued = 3 * D
    def ensure_landed(tag):
        if tag in Q:
            idx = Q.index(tag)
            after = len(Q) - 1 - idx
            A(f"s_waitcnt vmcnt({after})")
            del Q[:idx + 1]
    def compute(j, grp=False):
        ten, g, t = j // 96, (j % 96) // 3, j % 3
        r = lreg(j)
        if ten == 0:
            P = 16 + g % 8
            ACC = [P, 28, 29]
            if grp:
                for tt in range(3):
                    A(f"v_mov_b32 v{ACC[tt]}, 0")
                for k in range(4):
                    for tt in range(3):
                        A(f"v_dot2c_f32_bf16 v{ACC[tt]}, v{lreg(j-2+tt)+k}, v{4+4*tt+k}")
                A(f"v_add_f32 v28, v28, v29")
                A(f"v_add_f32 v{P}, v{P}, v28")
            else:
                if t == 0:
                    A(f"v_mov_b32 v{P}, 0")
                    A(f"v_mov_b32 v28, 0")
                ensure_landed(j)
                A(f"v_dot2c_f32_bf16 v{P}, v{r}, v{4+4*t}")
                A(f"v_dot2c_f32_bf16 v28, v{r+1}, v{5+4*t}")
                A(f"v_dot2c_f32_bf16 v{P}, v{r+2}, v{6+4*t}")
                A(f"v_dot2c_f32_bf16 v28, v{r+3}, v{7+4*t}")
                if t == 2:
                    A(f"v_add_f32 v{P}, v{P}, v28")
            if t == 2 and g % 8 == 7:
                S = 24 + g // 8
                for q in range(4):
                    A(f"v_add_f32_dpp v{16+q}, v{16+q}, v{16+q} row_shl:4 row_mask:0xf bank_mask:0x5")
                for q in range(4):
                    A(f"v_add_f32_dpp v{16+q}, v{20+q}, v{20+q} row_shr:4 row_mask:0xf bank_mask:0xa")
                for q in range(4):
                    A(f"v_add_f32_dpp v{16+q}, v{16+q}, v{16+q} quad_perm:[2,3,0,1] row_mask:0xf bank_mask:0xf")
                A("v_cndmask_b32 v16, v16, v18, s[10:11]")
                A("v_cndmask_b32 v17, v17, v19, s[10:11]")
                A("v_add_f32_dpp v16, v16, v16 quad_perm:[1,0,3,2] row_mask:0xf bank_mask:0xf")
                A("v_add_f32_dpp v17, v17, v17 quad_perm:[1,0,3,2] row_mask:0xf bank_mask:0xf")
                A(f"v_cndmask_b32 v{S}, v16, v17, s[8:9]")
        else:
            k8, i = g // 8, g % 8
            pl, ph = (28, 29) if g % 2 == 0 else (30, 31)
            if t == 0:
                obcast(pl, 24 + k8, i)
                A(f"v_lshlrev_b32 v{ph}, 16, v{pl}")
            ensure_landed(j)
            for k in range(4):
                A(f"v_dot2c_f32_bf16 v{32+8*t+2*k}, v{r+k}, v{pl}")
                A(f"v_dot2c_f32_bf16 v{33+8*t+2*k}, v{r+k}, v{ph}")
    def mid_parts():
        def p0():
            stamp_at(5)
            for s0 in (24, 26):
                A(f"""
                v_cvt_pk_bf16_f32 v2, v{s0}, v{s0+1}
                v_lshlrev_b32 v{s0}, 16, v2
                v_and_b32 v{s0+1}, 0xffff0000, v2
                v_mul_f32 v{s0}, {hex(SCALE)}, v{s0}
                v_mul_f32 v{s0+1}, {hex(SCALE)}, v{s0+1}
                v_cvt_pk_bf16_f32 v2, v{s0}, v{s0+1}
                v_lshlrev_b32 v{s0}, 16, v2
                v_and_b32 v{s0+1}, 0xffff0000, v2
                """)
            A("v_max3_f32 v62, v24, v25, v26")
            A("v_max_f32 v62, v62, v27")
        def p1():
            red64(62, 2, "v_max_f32")
        def p2():
            for s0 in range(24, 28):
                A(f"v_sub_f32 v{s0}, v{s0}, v62")
            for s0 in range(24, 28):
                A(f"v_mul_f32 v{s0}, {hex(LOG2E)}, v{s0}")
            for s0 in range(24, 28):
                A(f"v_exp_f32 v{s0}, v{s0}")
            A("v_add_f32 v63, v24, v25")
            A("v_add_f32 v2, v26, v27")
            A("v_add_f32 v63, v63, v2")
            for s0 in range(24, 28):
                A(f"v_cvt_pk_bf16_f32 v{s0}, v{s0}, 0")
            for k in range(24):
                A(f"v_mov_b32 v{32+k}, 0")
        def p3():
            red64(63, 2)
            A("buffer_store_dwordx2 v[62:63], v56, s[44:47], 0 offen sc1")
            Q.append("mls")
        def p4():
            A(f"""
            s_lshl_b32 s34, s3, 10
            v_lshl_add_u32 v4, v0, 4, s34
            s_lshl_b32 s35, s6, 2
            v_mov_b32 v5, s35
            s_lshl_b32 s34, s6, 12
            v_lshl_add_u32 v6, v0, 4, s34
            v_lshlrev_b32 v7, 2, v0
            s_mul_i32 s14, s4, 12288
            s_mul_i32 s35, s6, 6144
            s_add_u32 s14, s14, s35
            s_lshl_b32 s35, s5, 8
            s_add_u32 s14, s14, s35
            s_add_u32 s14, s14, {WS_OP}
            s_add_u32 s15, s14, 4096
            """)
        return [p0, p1, p2, p3, p4]
    def ml_calc():
        ensure_landed("ml")
        A("s_branch L_mlcalc")
        spin("L_mlretry")
        A("""
        s_sleep 8
        buffer_load_dwordx2 v[8:9], v59, s[44:47], 0 offen sc1
        s_waitcnt vmcnt(0)
        """)
        a.label("L_mlcalc")
        A("""
        v_max_u32 v2, v8, v9
        v_cmp_eq_u32 vcc, -1, v2
        s_cbranch_vccnz L_mlretry
        v_mov_b32 v3, v8
        """)
        red32(3, 2, "v_max_f32")
        A(f"""
        v_sub_f32 v8, v8, v3
        v_sub_f32 v62, v62, v3
        v_mul_f32 v8, {hex(LOG2E)}, v8
        v_mul_f32 v62, {hex(LOG2E)}, v62
        v_exp_f32 v8, v8
        v_exp_f32 v62, v62
        v_mul_f32 v8, v8, v9
        """)
        red32(8, 2)
        A("""
        v_rcp_f32 v8, v8
        v_mul_f32 v62, v62, v8
        """)
    work = []
    for j in range(96): work.append(("c", j))
    for fn in mid_parts(): work.append(("f", fn))
    for j in range(96, 192): work.append(("c", j))
    wi = 0
    done_c = 0
    while wi < len(work):
        if issued < NL and issued - 3 * D < done_c:
            checkpoint(issued)
            Wj = win_wait(issued)
            if len(Q) > Wj - 1:
                del Q[:len(Q) - (Wj - 1)]
            if issued == NL - 12:
                A("buffer_load_dwordx2 v[8:9], v59, s[44:47], 0 offen sc1")
                Q.append("ml")
            emit_load(issued)
            Q.append(issued)
            issued += 1
            if issued == NL - GATE_EARLY:
                A("s_mov_b64 exec, 1")
                A(f"ds_add_u32 v57, v58 offset:{L_CNT+32}")
                A("s_mov_b64 exec, -1")
            if issued == NL:
                ml_calc()
        n = 0
        while wi < len(work) and n < CATCH:
            kind, v = work[wi]
            if kind == "f":
                if n > 0: break
                v(); wi += 1; n = CATCH
                break
            if v in Q and issued < NL and issued - 3 * D < done_c:
                break
            if v < 96 and v % 3 == 0 and n == 0 and CATCH >= 3 and (v + 2) not in Q and v + 2 < issued:
                compute(v + 2, grp=True); wi += 3; done_c += 3; n += 3
                continue
            compute(v); wi += 1; done_c += 1
            n += (1 if v < 96 else 2)
    stamp_at(6)
    for k in range(12):
        A(f"v_permlane32_swap_b32 v{32+k}, v{44+k}")
    for k in range(12):
        A(f"v_add_f32 v{32+k}, v{32+k}, v{44+k}")
    for k in range(6):
        A(f"v_permlane16_swap_b32 v{32+k}, v{38+k}")
    for k in range(6):
        A(f"v_add_f32 v{32+k}, v{32+k}, v{38+k}")
    for k in range(3):
        A(f"v_add_f32_dpp v{32+k}, v{32+k}, v{32+k} row_ror:8 row_mask:0xf bank_mask:0x3")
    for k in range(3):
        A(f"v_add_f32_dpp v{32+k}, v{35+k}, v{35+k} row_ror:8 row_mask:0xf bank_mask:0xc")
    for k in range(3):
        A(f"v_mul_f32 v{32+k}, v{32+k}, v62")
    A(f"""
    ds_write_b96 v4, v[32:34] offset:{L_O}
    s_mov_b64 exec, 1
    ds_add_rtn_u32 v2, v5, v58 offset:{L_CNT}
    s_mov_b64 exec, -1
    ds_read_b96 v[32:34], v6 offset:{L_O}
    ds_read_b96 v[36:38], v6 offset:{L_O+1024}
    ds_read_b96 v[40:42], v6 offset:{L_O+2048}
    ds_read_b96 v[44:46], v6 offset:{L_O+3072}
    s_waitcnt lgkmcnt(4)
    v_readfirstlane_b32 s35, v2
    s_cmp_eq_u32 s35, 3
    s_cbranch_scc0 L_notlast
    s_waitcnt lgkmcnt(2)
    v_add_f32 v32, v32, v36
    v_add_f32 v33, v33, v37
    v_add_f32 v34, v34, v38
    s_waitcnt lgkmcnt(0)
    v_add_f32 v40, v40, v44
    v_add_f32 v41, v41, v45
    v_add_f32 v42, v42, v46
    v_add_f32 v32, v32, v40
    buffer_store_dword v32, v7, s[44:47], s14 offen sc1
    v_add_f32 v33, v33, v41
    buffer_store_dword v33, v7, s[44:47], s14 offen offset:2048 sc1
    v_add_f32 v34, v34, v42
    buffer_store_dword v34, v7, s[44:47], s15 offen sc1
    """)
    a.label("L_notlast")
    A("s_waitcnt lgkmcnt(0)")
    A("s_cmp_eq_u32 s6, 1")
    A("s_cbranch_scc1 L_fin")
    WR, WP, RR = 64, 96, 128
    A(f"""
    v_mov_b32 v8, v7
    s_lshl_b32 s34, s5, 2
    s_add_u32 s34, s34, s7
    s_mul_i32 s18, s34, 43
    s_lshr_b32 s18, s18, 7
    s_mul_i32 s19, s18, 3
    s_sub_u32 s19, s34, s19
    s_cmp_lt_u32 s34, 30
    s_cselect_b32 s20, 1, 0
    s_cmp_lt_u32 s2, 80
    s_cselect_b32 s21, 1, 0
    s_cmp_eq_u32 s7, 3
    s_cselect_b32 s21, s21, 0
    s_or_b32 s34, s20, s21
    s_cmp_eq_u32 s34, 0
    s_cbranch_scc1 L_fin
    v_lshrrev_b32 v2, 3, v0
    v_mul_u32_u24 v3, 3, v2
    v_add_u32 v3, s19, v3
    v_lshrrev_b32 v4, 3, v3
    v_and_b32 v3, 7, v3
    v_lshl_add_u32 v3, v4, 6, v3
    v_mul_u32_u24 v3, 1280, v3
    v_and_b32 v5, 7, v0
    v_lshl_add_u32 v3, v5, 4, v3
    v_lshlrev_b32 v9, 2, v2
    v_lshl_add_u32 v9, v5, 5, v9
    s_mul_i32 s34, s4, 245760
    s_lshl_b32 s35, s18, 7
    s_add_u32 s34, s34, s35
    s_mul_i32 s16, s4, 12288
    s_lshl_b32 s35, s19, 11
    s_add_u32 s16, s16, s35
    s_add_u32 s16, s16, {WS_OP}
    s_mul_i32 s22, s18, 24576
    s_mul_i32 s35, s4, 768
    s_add_u32 s22, s22, s35
    s_lshl_b32 s35, s19, 8
    s_add_u32 s22, s22, s35
    s_add_u32 s22, s22, {WS_Y}
    s_mov_b32 s17, 0
    s_cmp_eq_u32 s20, 0
    s_cbranch_scc1 L_rinit
    """)
    for i in range(8):
        if i >= 1:
            A("s_waitcnt vmcnt(0)")
        A(f"buffer_load_dwordx4 v[{WR+4*i}:{WR+4*i+3}], v3, s[52:55], s34 offen nt")
        A("s_add_u32 s34, s34, 10240")
    A("s_waitcnt vmcnt(0)")
    for i2 in range(4):
        r0, r1 = WR + 8 * i2, WR + 8 * i2 + 4
        for k in range(4):
            A(f"v_perm_b32 v{WP+8*i2+2*k}, v{r1+k}, v{r0+k}, s82")
            A(f"v_perm_b32 v{WP+8*i2+2*k+1}, v{r1+k}, v{r0+k}, s83")
    a.label("L_rinit")
    if ADAPT is not None:
        ctrl_setup()
    A("""
    s_cmp_eq_u32 s21, 0
    s_cbranch_scc1 L_oloop
    """)
    A(f"""
    s_cmp_ge_u32 s2, 40
    s_cselect_b32 s23, 1, 0
    s_mul_i32 s24, s23, 40
    s_sub_u32 s24, s2, s24
    s_lshl_b32 s35, s23, 4
    v_mov_b32 v2, s35
    ds_read_b96 v[28:30], v2 offset:{L_LN}
    s_mul_i32 s34, s23, 1280
    v_mul_u32_u24 v2, 20, v0
    buffer_load_dwordx4 v[16:19], v2, s[48:51], s34 offen
    buffer_load_dword v20, v2, s[48:51], s34 offen offset:16
    buffer_load_dwordx4 v[22:25], v2, s[60:63], 0 offen
    buffer_load_dword v26, v2, s[60:63], 0 offen offset:16
    v_and_b32 v3, 3, v0
    v_lshlrev_b32 v3, 2, v3
    v_lshrrev_b32 v4, 4, v0
    v_add_u32 v3, v3, v4
    s_lshl_b32 s35, s24, 4
    v_add_u32 v3, s35, v3
    v_lshl_add_u32 v10, v3, 1, s34
    buffer_load_ushort v11, v10, s[48:51], 0 offen
    v_mov_b32 v2, {L_CNT+24}
    ds_read_b64 v[6:7], v2
    v_lshlrev_b32 v2, 7, v0
    s_mov_b32 s34, {WS_FL}
    s_mov_b32 s35, {WS_FL+8192}
    s_mov_b32 s25, {WS_FL+16384}
    s_mov_b32 s26, {WS_FL+24576}
    """)
    spin("L_fpoll")
    A("""
    buffer_load_dwordx2 v[32:33], v2, s[44:47], s34 offen sc1
    buffer_load_dwordx2 v[34:35], v2, s[44:47], s35 offen sc1
    buffer_load_dwordx2 v[36:37], v2, s[44:47], s25 offen sc1
    buffer_load_dwordx2 v[38:39], v2, s[44:47], s26 offen sc1
    s_waitcnt vmcnt(0) lgkmcnt(0)
    v_cmp_ne_u64 vcc, v[32:33], v[6:7]
    v_cmp_ne_u64 s[68:69], v[34:35], v[6:7]
    s_or_b64 vcc, vcc, s[68:69]
    v_cmp_ne_u64 s[68:69], v[36:37], v[6:7]
    s_or_b64 vcc, vcc, s[68:69]
    v_cmp_ne_u64 s[68:69], v[38:39], v[6:7]
    s_or_b64 vcc, vcc, s[68:69]
    s_cbranch_scc1 L_fpoll
    v_mov_b32 v13, 0
    """)
    def xnorm(d, t):
        A(f"v_sub_f32 v{d}, v{d}, v30")
        rbf(d, d)
        A(f"""
        v_mul_f32 v{t}, v{d}, v29
        v_fma_f32 v{d}, -v{t}, v28, v{d}
        v_fma_f32 v{d}, v{d}, v29, v{t}
        """)
    for k in range(5):
        A(f"v_lshlrev_b32 v2, 16, v{16+k}")
        A(f"v_and_b32 v3, 0xffff0000, v{16+k}")
        xnorm(2, 4)
        xnorm(3, 4)
        A("v_cvt_pk_bf16_f32 v2, v2, v3")
        A(f"v_dot2c_f32_bf16 v13, v2, v{22+k}")
    red64(13, 2)
    rbf(13, 13)
    A("""
    v_mul_f32 v13, 0xbfb8aa3b, v13
    v_exp_f32 v13, v13
    v_add_f32 v13, 1.0, v13
    v_rcp_f32 v13, v13
    """)
    rbf(13, 13)
    A("v_lshlrev_b32 v11, 16, v11")
    A("v_mov_b32 v12, v11")
    xnorm(12, 4)
    rbf(12, 12)
    A(f"""
    v_lshrrev_b32 v2, 2, v0
    v_lshlrev_b32 v2, 8, v2
    v_and_b32 v3, 3, v0
    v_lshl_add_u32 v14, v3, 4, v2
    s_and_b32 s34, s24, 3
    s_lshl_b32 s34, s34, 6
    v_add_u32 v14, s34, v14
    s_lshr_b32 s34, s24, 2
    s_mul_i32 s35, s23, 10
    s_add_u32 s34, s34, s35
    s_lshl_b32 s25, s34, 13
    s_add_u32 s25, s25, {WS_F}
    s_add_u32 s26, s25, 4096
    v_mov_b32 v15, {OOB}
    s_mul_i32 s71, s34, 24576
    s_add_u32 s71, s71, {WS_Y}
    s_add_u32 s27, s71, 8192
    s_add_u32 s68, s71, 12288
    s_add_u32 s69, s71, 16384
    s_add_u32 s70, s71, 20480
    """)
    a.label("L_oloop")
    A(f"""
    s_lshl_b32 s34, s17, 2
    v_mov_b32 v31, s34
    """)
    spin("L_cwait")
    A(f"""
    ds_read_b32 v4, v31 offset:{L_CNT}
    s_waitcnt lgkmcnt(0)
    v_readfirstlane_b32 s34, v4
    s_cmp_eq_u32 s34, 4
    s_cbranch_scc1 L_go
    """)
    if ADAPT is not None:
        A("""
        s_or_b32 s34, s34, s3
        s_cmp_eq_u32 s34, 0
        s_cbranch_scc0 L_cw2
        """)
        ctrl_step(52)
        a.label("L_cw2", pad=False)
    A("""
    s_sleep 2
    s_branch L_cwait
    """)
    a.label("L_go", pad=False)
    A("""
    s_cmp_eq_u32 s20, 0
    s_cbranch_scc1 L_rpoll
    """)
    for xp in range(8):
        A(f"buffer_load_dword v{16+xp}, v8, s[44:47], s16 offen offset:{256*xp} sc1")
    A("s_branch L_ochk")
    spin("L_opoll")
    for xp in range(8):
        A(f"v_cmp_eq_u32 vcc, -1, v{16+xp}")
        A(f"s_cbranch_vccz L_osk{xp}")
        A(f"buffer_load_dword v{16+xp}, v8, s[44:47], s16 offen offset:{256*xp} sc1")
        a.label(f"L_osk{xp}", pad=False)
    a.label("L_ochk", pad=False)
    for k in range(8):
        A(f"v_mov_b32 v{32+k}, 0")
    A("""
    s_waitcnt vmcnt(0)
    v_max3_u32 v2, v16, v17, v18
    v_max3_u32 v3, v19, v20, v21
    v_add_f32 v24, v16, v17
    v_add_f32 v25, v18, v19
    v_max3_u32 v2, v2, v22, v23
    v_add_f32 v26, v20, v21
    v_add_f32 v27, v22, v23
    v_max_u32 v2, v2, v3
    v_add_f32 v24, v24, v25
    v_cmp_eq_u32 vcc, -1, v2
    v_add_f32 v26, v26, v27
    s_cbranch_vccnz L_opoll
    v_add_f32 v16, v24, v26
    v_mov_b32_dpp v17, v16 quad_perm:[1,0,3,2] row_mask:0xf bank_mask:0xf
    v_cvt_pk_bf16_f32 v16, v16, v17
    """)
    for i2 in range(4):
        A(f"v_mov_b32_dpp v{20+i2}, v16 row_newbcast:{2*i2} row_mask:0xf bank_mask:0x3")
    for i2 in range(4):
        A(f"v_mov_b32_dpp v{20+i2}, v16 row_newbcast:{8+2*i2} row_mask:0xf bank_mask:0xc")
    for i2 in range(4):
        for c in range(8):
            A(f"v_dot2c_f32_bf16 v{32+c}, v{20+i2}, v{WP+8*i2+c}")
    oct_red8(32)
    A("buffer_store_dword v32, v9, s[44:47], s22 offen sc1")
    stamp_at(7)
    A("""
    s_cmp_eq_u32 s21, 0
    s_cbranch_scc1 L_onext
    """)
    spin("L_rpoll")
    SO = [25, 26, 27, 68, 69, 70]
    for k in range(6):
        A(f"buffer_load_dwordx4 v[{RR+4*k}:{RR+4*k+3}], v{14 if k < 2 else 15}, s[44:47], s{SO[k]} offen sc1")
    A("s_waitcnt vmcnt(0)")
    A(f"v_max3_u32 v2, v{RR}, v{RR+1}, v{RR+2}")
    A(f"v_max3_u32 v3, v{RR+3}, v{RR+4}, v{RR+5}")
    for k in range(6, 24, 4):
        A(f"v_max3_u32 v2, v2, v{RR+k}, v{RR+k+1}")
        if k + 3 < 24:
            A(f"v_max3_u32 v3, v3, v{RR+k+2}, v{RR+k+3}")
    A("""
    v_max_u32 v2, v2, v3
    v_cmp_eq_u32 vcc, -1, v2
    """)
    for k in range(12):
        A(f"v_add_f32 v{RR+k}, v{RR+k}, v{RR+12+k}")
    A("s_cbranch_vccnz L_rpoll")
    for k in range(4):
        A(f"v_add_f32 v{RR+k}, v{RR+k}, v{RR+4+k}")
    for k in range(4):
        A(f"v_add_f32 v{RR+k}, v{RR+k}, v{RR+8+k}")
    A(f"""
    v_permlane32_swap_b32 v{RR}, v{RR+2}
    v_permlane32_swap_b32 v{RR+1}, v{RR+3}
    v_add_f32 v{RR}, v{RR}, v{RR+2}
    v_add_f32 v{RR+1}, v{RR+1}, v{RR+3}
    v_permlane16_swap_b32 v{RR}, v{RR+1}
    v_add_f32 v16, v{RR}, v{RR+1}
    v_add_f32_dpp v16, v16, v16 row_ror:8 row_mask:0xf bank_mask:0xf
    v_add_f32_dpp v16, v16, v16 row_ror:4 row_mask:0xf bank_mask:0xf
    """)
    rbf(16, 16)
    A("v_mul_f32 v16, v16, v13")
    rbf(16, 16)
    A("""
    v_add_f32 v16, v12, v16
    v_cvt_pk_bf16_f32 v16, v16, v16
    s_cmp_eq_u32 s17, 0
    s_cbranch_scc1 L_gcalc
    s_mov_b64 s[64:65], s[28:29]
    s_movk_i32 s66, 2560
    s_mov_b32 s67, 0x20000
    buffer_store_short v16, v10, s[64:67], 0 offen
    """)
    if DBGT:
        A(f"""
        s_memrealtime s[68:69]
        v_mov_b32 v2, {L_CNT+24}
        ds_read_b32 v3, v2
        s_waitcnt lgkmcnt(0)
        v_sub_u32 v3, s68, v3
        v_mov_b32 v2, 8
        s_mov_b64 exec, 1
        global_atomic_umax v2, v3, s[30:31] sc1
        """)
    A("s_branch L_fin")
    a.label("L_gcalc")
    A("""
    v_and_b32 v16, 0xffff0000, v16
    v_mul_f32 v17, 0xbfb8aa3b, v16
    v_exp_f32 v17, v17
    v_add_f32 v17, 1.0, v17
    v_rcp_f32 v17, v17
    v_mul_f32 v13, v16, v17
    """)
    rbf(13, 13)
    A("""
    v_mov_b32 v12, v11
    s_mov_b32 s25, s71
    s_add_u32 s26, s71, 4096
    v_mov_b32 v15, v14
    """)
    a.label("L_onext")
    A("""
    s_add_u32 s16, s16, 6144
    s_add_u32 s22, s22, 245760
    s_add_u32 s17, s17, 1
    s_cmp_lt_u32 s17, 2
    s_cbranch_scc1 L_oloop
    """)
    a.label("L_fin")
    if ts:
        stamp_at(8)
        A("""
        s_waitcnt lgkmcnt(0)
        s_add_u32 s32, s32, 0x4000000
        s_addc_u32 s33, s33, 0
        s_lshl_b32 s34, s2, 3
        s_add_u32 s34, s34, s3
        s_lshl_b32 s34, s34, 7
        v_lshlrev_b32 v1, 2, v0
        v_add_u32 v1, s34, v1
        """)
        for k in range(18):
            A(f"v_writelane_b32 v2, s{84+k}, {k}")
        A("""
        s_mov_b64 exec, 0x3ffff
        global_store_dword v1, v2, s[32:33] sc1
        """)
    a.label("L_end", pad=False)
    A("s_endpgm")
    a.raw('.section .rodata,"a"')
    a.raw(".p2align 6")
    a.raw(f".amdhsa_kernel {KNAME}")
    a.raw("  .amdhsa_next_free_vgpr 256")
    a.raw("  .amdhsa_next_free_sgpr 102")
    a.raw("  .amdhsa_accum_offset 256")
    a.raw("  .amdhsa_group_segment_fixed_size 0")
    a.raw("  .amdhsa_kernarg_size 104")
    a.raw("  .amdhsa_user_sgpr_count 2")
    a.raw("  .amdhsa_user_sgpr_kernarg_segment_ptr 1")
    a.raw("  .amdhsa_system_sgpr_workgroup_id_x 1")
    a.raw("  .amdhsa_float_denorm_mode_32 3")
    a.raw(".end_amdhsa_kernel")
    return a.text().replace("CPFMAX", "19")

def wf(w1, w2, w3, w4, e2=84, e3=170):
    return lambda j: w1 if j < 48 else (w2 if j < e2 else (w3 if j < e3 else w4))


if __name__ == "__main__":
    open("h3_a.s","w").write(gen(WF=wf(5,5,5,8), TSL=8, DBGT=True))
```

```python
import sys
from asmlib import Asm
KNAME = "recurrent_scan__mha_block_cached__moe_arch_mod__decode_kernel"
HEADER = open("recurrent_scan__mha_block_cached__moe_arch_mod__decode.s.ref").read().split("; Override launch")[0]

WS_FL = 0x0c0000
WS_R, WS_ML, WS_PG, WS_OP, WS_Y, WS_F, WS_END = 0x0, 0x100000, 0x108000, 0x110000, 0x200000, 0x280000, 0x300000
OOB = 0x40000000
L_PART, L_Q, L_O, L_CNT, L_LN, L_XP, L_END = 0, 12288, 13056, 21248, 21312, 21344, 21664
LOG2E = 0x3fb8aa3b
SCALE = 0x3d93cd3a

def gen(D=16, ts=False, kvflags=" nt", GATE_EARLY=2, CATCH=3, PRE=0, WF=None, CPF=True, ADAPT=None, TH=0, TSL=2, DBGT=False, EARLYN=False):
    a = Asm()
    A = a
    a.raw(HEADER.rstrip("\n"))
    a.raw(f"; @launch grid=(256,1,1) block=(512,1,1) lds={L_END}")
    a.raw('.amdgcn_target "amdgcn-amd-amdhsa--gfx950"')
    a.raw(".text")
    a.raw(f".globl {KNAME}")
    a.raw(".p2align 8")
    a.raw(f".type {KNAME},@function")
    a.raw(f"{KNAME}:")
    RB = 256 - 12 * D
    W = WF(0)
    assert RB >= 64
    def lreg(j): return RB + 4 * (j % (3 * D))
    def stamp_at(k):
        if ts:
            A(f"s_memrealtime s[{84+2*k}:{85+2*k}]")
    def spin(label):
        a.label(label)
        A("s_sub_u32 s75, s75, 1")
        A("s_cbranch_scc1 L_end")
    def red32(r, t, op="v_add_f32"):
        A(f"""
        v_mov_b32 v{t}, v{r}
        v_permlane16_swap_b32 v{r}, v{t}
        {op} v{r}, v{r}, v{t}
        {op}_dpp v{r}, v{r}, v{r} row_ror:8 row_mask:0xf bank_mask:0xf
        {op}_dpp v{r}, v{r}, v{r} row_ror:4 row_mask:0xf bank_mask:0xf
        {op}_dpp v{r}, v{r}, v{r} row_ror:2 row_mask:0xf bank_mask:0xf
        {op}_dpp v{r}, v{r}, v{r} row_ror:1 row_mask:0xf bank_mask:0xf
        """)
    def red64(r, t, op="v_add_f32"):
        A(f"""
        v_mov_b32 v{t}, v{r}
        v_permlane32_swap_b32 v{r}, v{t}
        {op} v{r}, v{r}, v{t}
        """)
        red32(r, t, op)
    def rbf(d, s):
        A(f"v_cvt_pk_bf16_f32 v{d}, v{s}, v{s}")
        A(f"v_and_b32 v{d}, 0xffff0000, v{d}")
    def oct_red8(r):
        for k in range(4): A(f"v_permlane32_swap_b32 v{r+k}, v{r+4+k}")
        for k in range(4): A(f"v_add_f32 v{r+k}, v{r+k}, v{r+4+k}")
        for k in range(2): A(f"v_permlane16_swap_b32 v{r+k}, v{r+2+k}")
        for k in range(2): A(f"v_add_f32 v{r+k}, v{r+k}, v{r+2+k}")
        A(f"v_add_f32_dpp v{r+2}, v{r}, v{r} row_ror:8 row_mask:0xf bank_mask:0x3")
        A(f"v_add_f32_dpp v{r+3}, v{r+1}, v{r+1} row_ror:8 row_mask:0xf bank_mask:0xc")
        A(f"v_cndmask_b32 v{r}, v{r+2}, v{r+3}, s[12:13]")
    def obcast(d, s, i):
        A(f"v_mov_b32_dpp v{d}, v{s} row_newbcast:{i} row_mask:0xf bank_mask:0x3")
        A(f"v_mov_b32_dpp v{d}, v{s} row_newbcast:{8+i} row_mask:0xf bank_mask:0xc")
    def emit_load(j):
        ten, g, t = j // 96, (j % 96) // 3, j % 3
        srd = "s[36:39]" if ten == 0 else "s[40:43]"
        if t == 0 and g % 2 == 0:
            A(f"s_mov_b32 s76, {g*3072}")
        r = lreg(j)
        A(f"buffer_load_dwordx4 v[{r}:{r+3}], v1, {srd}, s76 offen offset:{(g%2)*3072 + t*128}{kvflags}")
    lbl = [0]
    def win_wait(j):
        Wj = WF(j)
        A(f"s_waitcnt vmcnt({Wj-1})")
        if ADAPT is not None and ADAPT(j) < Wj:
            lbl[0] += 1
            A(f"s_cbranch_vccz L_aw{lbl[0]}")
            A(f"s_waitcnt vmcnt({ADAPT(j)-1})")
            a.lines.append(f"L_aw{lbl[0]}:")
        return Wj
    def checkpoint(j):
        if ADAPT is None or j % 6 != 0 or j < 12: return
        A(f"""
        s_waitcnt lgkmcnt(0)
        v_cmp_ne_u32 vcc, 0, v60
        v_add_u32 v61, 1, v61
        ds_write_b32 v57, v61 offset:{L_CNT+48}
        ds_read_b32 v60, v58 offset:{L_CNT+8-1}
        """)

    if EARLYN: A("s_memrealtime s[80:81]")
    A("s_cmp_ge_u32 s2, 256")
    A("s_cbranch_scc1 L_end")
    A("s_load_dwordx16 s[8:23], s[0:1], 0")
    A("s_load_dwordx8 s[24:31], s[0:1], 64")
    A("s_load_dwordx2 s[32:33], s[0:1], 96")
    stamp_at(0)
    A(f"""
    v_lshrrev_b32 v2, 6, v0
    v_and_b32 v0, 63, v0
    v_readfirstlane_b32 s3, v2
    s_lshr_b32 s4, s2, 3
    s_and_b32 s5, s2, 7
    v_lshrrev_b32 v2, 3, v0
    v_mul_u32_u24 v2, 384, v2
    v_and_b32 v3, 7, v0
    v_lshl_add_u32 v1, v3, 4, v2
    s_lshr_b32 s6, s3, 2
    s_and_b32 s7, s3, 3
    s_movk_i32 s50, 2560
    s_mov_b32 s51, 0x20000
    s_cmp_eq_u32 s6, 0
    s_cbranch_scc1 L_flood
    """)
    def common_sgprs():
        A(f"""
        s_lshl_b32 s68, s6, 5
        s_add_u32 s68, s68, s4
        s_lshl_b32 s68, s68, 5
        s_lshl_b32 s73, s5, 2
        s_add_u32 s68, s68, s73
        s_add_u32 s68, s68, s7
        s_mul_i32 s68, s68, 98304
        s_mov_b32 s38, 98304
        s_mov_b32 s39, 0x20000
        s_lshl_b32 s72, s4, 1
        s_add_u32 s72, s72, s6
        s_lshl_b32 s72, s72, 8
        s_add_u32 s72, s72, {WS_ML}
        s_mov_b32 s75, 0x40000
        s_mov_b32 s46, {WS_END}
        s_mov_b32 s47, 0x20000
        """)
    def srd_rest():
        A(f"""
        s_add_u32 s40, s12, s68
        s_addc_u32 s41, s13, 0
        s_mov_b32 s42, 98304
        s_mov_b32 s43, 0x20000
        s_mov_b64 s[56:57], s[26:27]
        s_mov_b32 s58, 1966080
        s_mov_b32 s59, 0x20000
        s_mov_b64 s[60:61], s[20:21]
        s_movk_i32 s62, 1280
        s_mov_b32 s63, 0x20000
        s_mov_b64 s[64:65], s[28:29]
        s_movk_i32 s66, 2560
        s_mov_b32 s67, 0x20000
        s_mov_b32 s82, 0x05040100
        s_mov_b32 s83, 0x07060302
        s_lshl_b32 s73, s5, 2
        s_add_u32 s73, s73, s7
        s_lshl_b32 s73, s73, 3
        s_add_u32 s73, s73, s72
        v_mov_b32 v56, {OOB}
        v_writelane_b32 v56, s73, 0
        s_lshl_b32 s34, s7, 2
        v_mov_b32 v57, s34
        v_mov_b32 v58, 1
        v_mov_b32 v60, 0
        s_lshl_b32 s34, s6, 5
        v_mov_b32 v61, s34
        s_mov_b64 vcc, 0
        """)
    WB, PT, XV = 64, 104, 112
    A(f"""
    s_mul_i32 s69, s5, 80
    s_mul_i32 s70, s7, 20
    s_add_u32 s69, s69, s70
    s_mul_i32 s70, s69, 12288
    s_mul_i32 s71, s4, 384
    s_add_u32 s70, s70, s71
    v_mul_u32_u24 v58, 40, v0
    v_lshrrev_b32 v3, 5, v0
    v_mul_u32_u24 v59, 1280, v3
    v_and_b32 v2, 31, v0
    v_add_u32 v4, s69, v2
    v_lshl_add_u32 v59, v4, 1, v59
    v_mul_u32_u24 v3, 122880, v3
    v_lshl_add_u32 v3, v2, 4, v3
    v_mov_b32 v4, {OOB}
    v_cmp_gt_u32 vcc, 24, v2
    v_cndmask_b32 v62, v4, v3, vcc
    s_mov_b32 s54, 7864320
    s_mov_b32 s55, 0x20000
    s_waitcnt lgkmcnt(0)
    s_mov_b64 s[48:49], s[8:9]
    s_mov_b64 s[52:53], s[14:15]
    buffer_load_dwordx4 v[16:19], v58, s[48:51], 0 offen
    buffer_load_dwordx4 v[20:23], v58, s[48:51], 0 offen offset:16
    buffer_load_dwordx2 v[24:25], v58, s[48:51], 0 offen offset:32
    buffer_load_ushort v26, v59, s[48:51], 0 offen
    """)
    for j in range(10):
        A(f"buffer_load_dwordx4 v[{WB+4*j}:{WB+4*j+3}], v62, s[52:55], s70 offen nt")
        if j < 9:
            A("s_add_u32 s70, s70, 12288")
    A(f"""
    s_mov_b64 exec, 0xffff
    v_lshlrev_b32 v2, 2, v0
    v_mov_b32 v4, 0
    ds_write_b32 v2, v4 offset:{L_CNT}
    s_mov_b64 exec, -1
    s_waitcnt lgkmcnt(0)
    s_barrier
    """)
    common_sgprs()
    A("""
    s_add_u32 s36, s10, s68
    s_addc_u32 s37, s11, 0
    s_mov_b64 s[44:45], s[32:33]
    s_mov_b64 s[78:79], s[22:23]
    s_mov_b64 s[80:81], s[24:25]
    """)
    srd_rest()
    stamp_at(7)
    A("s_waitcnt vmcnt(10)")
    for k in range(10):
        A(f"v_lshlrev_b32 v{32+2*k}, 16, v{16+k}")
        A(f"v_and_b32 v{33+2*k}, 0xffff0000, v{16+k}")
    A("v_add_f32 v14, v32, v33")
    A("v_add_f32 v15, v34, v35")
    for k in range(4, 20, 2):
        A(f"v_add_f32 v14, v14, v{32+k}")
        A(f"v_add_f32 v15, v15, v{33+k}")
    A("v_add_f32 v14, v14, v15")
    red32(14, 15)
    A("v_mul_f32 v14, 0x3acccccd, v14")
    for k in range(20):
        A(f"v_sub_f32 v{32+k}, v{32+k}, v14")
    A("v_mul_f32 v12, v32, v32")
    A("v_mul_f32 v13, v33, v33")
    for k in range(2, 20, 2):
        A(f"v_fmac_f32 v12, v{32+k}, v{32+k}")
        A(f"v_fmac_f32 v13, v{33+k}, v{33+k}")
    A("v_add_f32 v12, v12, v13")
    red32(12, 13)
    A("v_mul_f32 v12, 0x3acccccd, v12")
    rbf(14, 14)
    rbf(12, 12)
    A("v_add_f32 v12, 0x3727c5ac, v12")
    rbf(12, 12)
    A("v_sqrt_f32 v12, v12")
    rbf(12, 12)
    A("v_rcp_f32 v13, v12")
    A("v_lshlrev_b32 v26, 16, v26")
    A("v_sub_f32 v26, v26, v14")
    rbf(26, 26)
    A("""
    v_mul_f32 v15, v26, v13
    v_fma_f32 v11, -v15, v12, v26
    v_fmac_f32 v15, v11, v13
    v_mov_b32_dpp v11, v15 quad_perm:[1,0,3,2] row_mask:0xf bank_mask:0xf
    v_cvt_pk_bf16_f32 v15, v15, v11
    """)
    A(f"""
    v_lshrrev_b32 v2, 5, v0
    v_lshlrev_b32 v3, 4, v2
    ds_write_b96 v3, v[12:14] offset:{L_LN}
    v_mul_u32_u24 v2, 160, v2
    v_and_b32 v3, 31, v0
    v_lshl_add_u32 v2, v3, 1, v2
    s_mul_i32 s34, s7, 40
    v_add_u32 v2, s34, v2
    s_mov_b32 exec_lo, 0x55555
    s_mov_b32 exec_hi, 0x55555
    ds_write_b32 v2, v15 offset:{L_XP}
    s_mov_b64 exec, -1
    v_lshrrev_b32 v2, 5, v0
    v_mul_u32_u24 v2, 20, v2
    v_add_u32 v2, s34, v2
    """)
    for b in range(2):
        for p in range(5):
            A(f"ds_read_b32 v{XV+5*b+p}, v2 offset:{L_XP+160*b+4*p}")
    for k in range(16):
        A(f"v_mov_b32 v{32+k}, 0")
    for p in range(5):
        A(f"s_waitcnt vmcnt({8-2*p})")
        r0, r1 = WB + 8 * p, WB + 8 * p + 4
        for k in range(4):
            A(f"v_perm_b32 v{PT+2*k}, v{r1+k}, v{r0+k}, s82")
            A(f"v_perm_b32 v{PT+2*k+1}, v{r1+k}, v{r0+k}, s83")
        if p == 0:
            A("s_waitcnt lgkmcnt(0)")
        for b in range(2):
            for c in range(8):
                A(f"v_dot2c_f32_bf16 v{32+8*b+c}, v{XV+5*b+p}, v{PT+c}")
    A(f"""
    s_mul_i32 s34, s7, 3072
    v_lshrrev_b32 v2, 5, v0
    v_mul_u32_u24 v2, 1536, v2
    v_and_b32 v3, 31, v0
    v_lshl_add_u32 v2, v3, 5, v2
    v_add_u32 v2, s34, v2
    v_mov_b32 v3, {L_CNT+16}
    s_mov_b32 exec_lo, 0xffffff
    s_mov_b32 exec_hi, 0xffffff
    ds_write_b128 v2, v[32:35] offset:{L_PART}
    ds_write_b128 v2, v[36:39] offset:{L_PART+16}
    ds_write_b128 v2, v[40:43] offset:{L_PART+768}
    ds_write_b128 v2, v[44:47] offset:{L_PART+784}
    s_mov_b64 exec, 1
    ds_add_u32 v3, v58
    s_mov_b64 exec, -1
    s_cmp_eq_u32 s3, 7
    s_cbranch_scc1 L_qx
    """)
    stamp_at(1)
    A("""
    s_waitcnt lgkmcnt(0)
    s_barrier
    s_cmp_eq_u32 s3, 4
    s_cbranch_scc1 L_ffn
    s_cmp_eq_u32 s3, 5
    s_cbranch_scc1 L_gate
    """)
    a.label("L_qx", pad=False)
    GB, G2 = 64, 96
    A(f"""
    s_sub_u32 s18, 7, s3
    s_mul_i32 s19, s18, 768
    v_lshl_add_u32 v2, v0, 4, s19
    s_lshl_b32 s35, s4, 3
    s_mul_i32 s34, s4, 18432
    s_add_u32 s34, s34, s19
    s_add_u32 s78, s32, s34
    s_addc_u32 s79, s33, 0
    """)
    spin("L_pwait")
    A(f"""
    ds_read_b32 v4, v3
    s_waitcnt lgkmcnt(0)
    v_readfirstlane_b32 s34, v4
    s_cmp_eq_u32 s34, 5
    s_cbranch_scc0 L_pwait
    s_mov_b32 exec_hi, 0xffff
    """)
    stamp_at(1)
    for w in range(8):
        A(f"ds_read_b128 v[{GB+4*w}:{GB+4*w+3}], v2 offset:{L_PART+w*1536}")
    A("s_mul_i32 s34, s2, 2304")
    A("s_waitcnt lgkmcnt(0)")
    for st in (16, 8, 4):
        for k in range(st):
            A(f"v_add_f32 v{GB+k}, v{GB+k}, v{GB+st+k}")
    A(f"buffer_store_dwordx4 v[{GB}:{GB+3}], v2, s[44:47], s34 offen sc1")
    stamp_at(2)
    A(f"""
    s_mul_i32 s19, s18, 384
    v_lshl_add_u32 v4, v0, 3, s19
    """)
    A(f"""
    s_cmp_eq_u32 s18, 1
    s_cbranch_scc1 L_tpoll
    ds_read_b64 v[6:7], v3 offset:8
    s_lshl_b32 s34, s4, 10
    s_add_u32 s34, s34, {WS_FL}
    s_add_u32 s26, s32, s34
    s_addc_u32 s27, s33, 0
    s_waitcnt lgkmcnt(0)
    v_readfirstlane_b32 s24, v6
    v_readfirstlane_b32 s25, v7
    """)
    spin("L_qpoll")
    FS = [8, 10, 12, 14, 16, 20, 22, 68]
    for xp in range(8):
        A(f"s_load_dwordx2 s[{FS[xp]}:{FS[xp]+1}], s[26:27], {xp*128} glc")
    A("s_waitcnt lgkmcnt(0)")
    for xp in range(8):
        A(f"s_xor_b64 s[{FS[xp]}:{FS[xp]+1}], s[{FS[xp]}:{FS[xp]+1}], s[24:25]")
    for xp in range(1, 8):
        A(f"s_or_b64 s[8:9], s[8:9], s[{FS[xp]}:{FS[xp]+1}]")
    A("""
    s_cbranch_scc1 L_qpoll
    s_branch L_tpoll
    """)
    a.label("L_tretry", pad=False)
    A("""
    s_cmp_eq_u32 s18, 0
    s_cbranch_scc1 L_tsl
    s_sleep 32
    """)
    a.label("L_tsl", pad=False)
    A(f"s_sleep {TSL}")
    spin("L_tpoll")
    for xp in range(8):
        A(f"s_load_dword s{8+xp}, s[78:79], {xp*2304+764} glc")
    A("s_waitcnt lgkmcnt(0)")
    for xp in range(1, 8):
        A(f"s_max_u32 s8, s8, s{8+xp}")
    A("""
    s_cmp_eq_u32 s8, -1
    s_cbranch_scc1 L_tretry
    """)
    a.label("L_gath", pad=False)
    A("s_mul_i32 s34, s4, 18432")
    for xp in range(8):
        A(f"buffer_load_dwordx4 v[{G2+4*xp}:{G2+4*xp+3}], v2, s[44:47], s34 offen sc1")
        if xp < 7:
            A("s_add_u32 s34, s34, 2304")
    A("s_waitcnt vmcnt(0)")
    A(f"v_max_u32 v12, v{G2}, v{G2+1}")
    A(f"v_max_u32 v13, v{G2+2}, v{G2+3}")
    for k in range(4, 32, 4):
        A(f"v_max3_u32 v12, v12, v{G2+k}, v{G2+k+1}")
        A(f"v_max3_u32 v13, v13, v{G2+k+2}, v{G2+k+3}")
    A("""
    v_max_u32 v12, v12, v13
    v_cmp_eq_u32 vcc, -1, v12
    s_cbranch_vccnz L_tretry
    """)
    stamp_at(3)
    for st in (16, 8, 4):
        for k in range(st):
            A(f"v_add_f32 v{G2+k}, v{G2+k}, v{G2+st+k}")
    A(f"""
    v_cvt_pk_bf16_f32 v{G2}, v{G2}, v{G2+1}
    v_cvt_pk_bf16_f32 v{G2+1}, v{G2+2}, v{G2+3}
    ds_write_b64 v4, v[{G2}:{G2+1}] offset:{L_Q}
    s_mov_b32 exec_hi, -1
    s_cmp_eq_u32 s3, 7
    s_cbranch_scc0 L_q1done
    s_waitcnt lgkmcnt(0)
    s_barrier
    s_branch L_gate
    """)
    a.label("L_q1done", pad=False)
    A(f"""
    v_lshlrev_b32 v2, 2, v0
    s_mov_b64 exec, 0xf
    ds_add_u32 v2, v58 offset:{L_CNT+32}
    s_mov_b64 exec, -1
    s_branch L_gate
    """)
    a.label("L_ffn", pad=False)
    FW, FX = 64, 152
    A(f"""
    s_mul_i32 s34, s5, 245760
    s_mul_i32 s35, s4, 96
    s_add_u32 s34, s34, s35
    s_add_u32 s78, s78, s34
    s_addc_u32 s79, s79, 0
    s_add_u32 s80, s80, s34
    s_addc_u32 s81, s81, 0
    s_sub_u32 s80, s80, 96
    s_subb_u32 s81, s81, 0
    v_lshrrev_b32 v4, 4, v0
    v_and_b32 v5, 15, v0
    v_mul_u32_u24 v6, 61440, v4
    v_lshl_add_u32 v6, v5, 4, v6
    v_mov_b32 v7, 0
    v_mov_b32 v2, s80
    v_mov_b32 v3, s81
    s_mov_b32 exec_lo, 0x003f003f
    s_mov_b32 exec_hi, 0x003f003f
    v_mov_b32 v2, s78
    v_mov_b32 v3, s79
    s_mov_b64 exec, -1
    v_mul_u32_u24 v8, 40, v4
    v_mov_b32 v10, 3072
    v_mov_b32 v11, 0
    """)
    for b in range(2):
        for p in range(10):
            A(f"ds_read_b32 v{FX+10*b+p}, v8 offset:{L_XP+160*b+4*p}")
    A("""
    s_mov_b32 exec_lo, 0x0fff0fff
    s_mov_b32 exec_hi, 0x0fff0fff
    v_lshl_add_u64 v[2:3], v[6:7], 0, v[2:3]
    """)
    for j in range(20):
        if j >= 3:
            A("s_waitcnt vmcnt(2)")
        A(f"global_load_dwordx4 v[{FW+4*j}:{FW+4*j+3}], v[2:3], off nt")
        if j < 19:
            A("v_lshl_add_u64 v[2:3], v[10:11], 0, v[2:3]")
    A("s_mov_b64 exec, -1")
    for k in range(16):
        A(f"v_mov_b32 v{32+k}, 0")
    A("s_waitcnt vmcnt(0) lgkmcnt(0)")
    for p in range(10):
        r0, r1 = FW + 8 * p, FW + 8 * p + 4
        for k in range(4):
            A(f"v_perm_b32 v{144+2*k}, v{r1+k}, v{r0+k}, s82")
            A(f"v_perm_b32 v{144+2*k+1}, v{r1+k}, v{r0+k}, s83")
        for b in range(2):
            for c in range(8):
                A(f"v_dot2c_f32_bf16 v{32+8*b+c}, v{FX+10*b+p}, v{144+c}")
    for k in range(8): A(f"v_permlane32_swap_b32 v{32+k}, v{40+k}")
    for k in range(8): A(f"v_add_f32 v{32+k}, v{32+k}, v{40+k}")
    for k in range(4): A(f"v_permlane16_swap_b32 v{32+k}, v{36+k}")
    for k in range(4): A(f"v_add_f32 v{32+k}, v{32+k}, v{36+k}")
    A(f"""
    v_lshrrev_b32 v2, 5, v0
    v_mul_u32_u24 v2, 384, v2
    v_lshl_add_u32 v2, v5, 5, v2
    v_and_b32 v3, 16, v0
    v_add_u32 v2, v2, v3
    s_mul_i32 s34, s2, 2304
    s_mov_b32 exec_lo, 0x0fff0fff
    s_mov_b32 exec_hi, 0x0fff0fff
    buffer_store_dwordx4 v[32:35], v2, s[44:47], s34 offen offset:1536 sc1
    s_mov_b64 exec, -1
    v_lshrrev_b32 v3, 3, v0
    v_mul_u32_u24 v3, 24, v3
    v_bfe_u32 v4, v0, 1, 2
    v_mul_u32_u24 v4, 192, v4
    v_and_b32 v5, 1, v0
    v_mul_u32_u24 v5, 12, v5
    v_add3_u32 v3, v3, v4, v5
    """)
    FG = 64
    spin("L_fgath")
    A("s_sleep 32")
    A("s_mul_i32 s34, s4, 18432")
    for xp in range(8):
        A(f"buffer_load_dwordx3 v[{FG+4*xp}:{FG+4*xp+2}], v3, s[44:47], s34 offen offset:1536 sc1")
        if xp < 7:
            A("s_add_u32 s34, s34, 2304")
    A("s_waitcnt vmcnt(0)")
    A(f"v_max3_u32 v12, v{FG}, v{FG+1}, v{FG+2}")
    for xp in range(1, 8):
        A(f"v_max3_u32 v13, v{FG+4*xp}, v{FG+4*xp+1}, v{FG+4*xp+2}")
        A("v_max_u32 v12, v12, v13")
    A("""
    v_cmp_eq_u32 vcc, -1, v12
    s_cbranch_vccnz L_fgath
    """)
    for st in (16, 8, 4):
        for k in range(st):
            if k % 4 != 3:
                A(f"v_add_f32 v{FG+k}, v{FG+k}, v{FG+st+k}")
    for r in (FG, FG + 1, FG + 2):
        rbf(r, r)
        A(f"""
        v_mov_b32_dpp v12, v{r} quad_perm:[2,3,0,1] row_mask:0xf bank_mask:0xf
        v_mul_f32 v13, 0xbfb8aa3b, v{r}
        v_exp_f32 v13, v13
        v_add_f32 v13, 1.0, v13
        v_rcp_f32 v13, v13
        v_mul_f32 v13, v{r}, v13
        """)
        rbf(13, 13)
        A(f"""
        v_mul_f32 v{r}, v13, v12
        v_mov_b32_dpp v12, v{r} quad_perm:[1,0,3,2] row_mask:0xf bank_mask:0xf
        v_cvt_pk_bf16_f32 v{r}, v{r}, v12
        """)
    for b in range(2):
        for j in range(3):
            obcast(16 + 3 * b + j, FG + j, 4 * b)
    A(f"""
    v_lshrrev_b32 v4, 3, v0
    v_mul_u32_u24 v2, 7680, v4
    v_and_b32 v5, 7, v0
    v_lshl_add_u32 v2, v5, 4, v2
    v_lshlrev_b32 v3, 2, v4
    v_lshl_add_u32 v3, v5, 5, v3
    s_mov_b32 s12, 0xff00ff00
    s_mov_b32 s13, 0xff00ff00
    s_mov_b32 s18, s5
    """)
    DB, DP = 96, 128
    a.label("L_ftask")
    A(f"""
    s_mul_i32 s34, s4, 61440
    s_lshl_b32 s35, s18, 7
    s_add_u32 s34, s34, s35
    s_add_u32 s35, s34, 3840
    """)
    for j in range(6):
        if j >= 2:
            A("s_waitcnt vmcnt(1)")
        A(f"buffer_load_dwordx4 v[{DB+4*j}:{DB+4*j+3}], v2, s[56:59], s{34 if j < 3 else 35} offen offset:{(j%3)*1280} nt")
    for k in range(16):
        A(f"v_mov_b32 v{32+k}, 0")
    A(f"""
    s_lshl_b32 s34, s18, 13
    s_lshl_b32 s35, s4, 8
    s_add_u32 s34, s34, s35
    s_add_u32 s34, s34, {WS_F}
    s_add_u32 s35, s34, 81920
    s_waitcnt vmcnt(0)
    """)
    for j in range(3):
        r0, r1 = DB + 4 * j, DB + 4 * (j + 3)
        for k in range(4):
            A(f"v_perm_b32 v{DP+8*j+2*k}, v{r1+k}, v{r0+k}, s82")
            A(f"v_perm_b32 v{DP+8*j+2*k+1}, v{r1+k}, v{r0+k}, s83")
    for j in range(3):
        for b in range(2):
            for c in range(8):
                A(f"v_dot2c_f32_bf16 v{32+8*b+c}, v{16+3*b+j}, v{DP+8*j+c}")
    oct_red8(32)
    oct_red8(40)
    A("""
    buffer_store_dword v32, v3, s[44:47], s34 offen sc1
    buffer_store_dword v40, v3, s[44:47], s35 offen sc1
    s_add_u32 s18, s18, 8
    s_cmp_lt_u32 s18, 10
    s_cbranch_scc1 L_ftask
    """)
    stamp_at(2)
    A("s_branch L_gate")

    def ctrl_step(sb):
        A(f"""
        v_mov_b32 v2, 0
        ds_read_b128 v[4:7], v2 offset:{L_CNT+48}
        s_load_dwordx16 s[{sb}:{sb+15}], s[78:79], 0 glc
        s_waitcnt lgkmcnt(0)
        v_add_u32 v4, v4, v5
        v_add3_u32 v4, v4, v6, v7
        buffer_store_dword v4, v63, s[44:47], 0 offen sc1
        s_mov_b32 m0, s74
        s_nop 0
        s_movrels_b32 s34, s{sb}
        """)
        for k in range(1, 16):
            A(f"s_add_u32 s{sb}, s{sb}, s{sb+k}")
        A(f"""
        s_lshl_b32 s34, s34, 4
        s_add_u32 s{sb}, s{sb}, {TH}
        s_cmp_gt_i32 s34, s{sb}
        s_cselect_b32 s34, 1, 0
        v_mov_b32 v3, s34
        ds_write_b32 v2, v3 offset:{L_CNT+8}
        """)
    def ctrl_setup():
        A(f"""
        s_and_b32 s74, s2, 15
        s_lshr_b32 s34, s2, 4
        s_lshl_b32 s34, s34, 6
        s_add_u32 s34, s34, {WS_PG}
        s_add_u32 s78, s32, s34
        s_addc_u32 s79, s33, 0
        s_lshl_b32 s34, s2, 2
        s_add_u32 s34, s34, {WS_PG}
        v_mov_b32 v63, {OOB}
        v_writelane_b32 v63, s34, 0
        """)
    a.label("L_flood", pad=False)
    A("""
    s_or_b32 s34, s2, s3
    s_cmp_eq_u32 s34, 2
    s_cbranch_scc0 L_nonon
    s_cmp_eq_u32 s2, 0
    s_cbranch_scc0 L_nonon
    NREAD
    v_mov_b32 v2, 0
    s_waitcnt lgkmcnt(0)
    s_or_b32 s80, s80, 1
    s_bitset1_b32 s81, 31
    v_mov_b32 v4, s80
    v_mov_b32 v5, s81
    s_mov_b64 exec, 1
    global_store_dwordx2 v2, v[4:5], s[30:31] sc1
    s_mov_b64 exec, -1
    """)
    a.label("L_nonon", pad=False)
    common_sgprs()
    if CPF:
        A("""
        s_cmp_eq_u32 s3, 1
        s_cbranch_scc0 L_nocpf
        s_getpc_b64 s[78:79]
        """)
        a.label("L_pcref", pad=False)
        A(f"""
        s_sub_u32 s78, s78, L_pcref-{KNAME}
        s_subb_u32 s79, s79, 0
        s_min_u32 s34, s4, CPFMAX
        s_lshl_b32 s34, s34, 10
        v_lshl_add_u32 v2, v0, 4, s34
        global_load_dwordx4 v[16:19], v2, s[78:79]
        """)
        a.label("L_nocpf", pad=False)
    A("""
    s_cmp_eq_u32 s3, 0
    s_cbranch_scc0 L_nores0
    """)
    A(f"""
    v_lshlrev_b32 v57, 4, v0
    v_mov_b32 v27, {OOB}
    v_cmp_gt_u32 vcc, 48, v0
    v_cndmask_b32 v58, v27, v57, vcc
    v_mov_b32 v28, -1
    v_mov_b32 v29, -1
    v_mov_b32 v30, -1
    v_mov_b32 v31, -1
    s_mul_i32 s69, s2, 2304
    v_lshrrev_b32 v2, 4, v0
    v_and_b32 v3, 15, v0
    v_lshlrev_b32 v3, 4, v3
    v_lshl_add_u32 v59, v2, 11, v3
    v_add_u32 v60, 8192, v59
    v_cmp_gt_u32 vcc, 32, v0
    v_cndmask_b32 v60, v27, v60, vcc
    s_mul_i32 s70, s4, 12288
    s_lshl_b32 s71, s5, 8
    s_add_u32 s70, s70, s71
    s_add_u32 s70, s70, {WS_OP}
    s_lshl_b32 s71, s5, 2
    v_add_u32 v4, s71, v2
    v_mul_u32_u24 v5, 43, v4
    v_lshrrev_b32 v5, 7, v5
    v_mul_u32_u24 v6, 3, v5
    v_sub_u32 v6, v4, v6
    v_mul_u32_u24 v5, 24576, v5
    v_lshl_add_u32 v5, v6, 8, v5
    v_add_u32 v61, v5, v3
    v_cmp_gt_u32 vcc, 30, v4
    v_cndmask_b32 v61, v27, v61, vcc
    s_mul_i32 s77, s4, 768
    s_add_u32 s77, s77, {WS_Y}
    s_add_u32 s78, s77, 245760
    v_and_b32 v4, 1, v2
    v_mul_u32_u24 v4, 81920, v4
    v_lshrrev_b32 v5, 1, v2
    v_lshl_add_u32 v5, v5, 3, s5
    v_lshl_add_u32 v4, v5, 13, v4
    v_add_u32 v62, v4, v3
    v_cmp_gt_u32 vcc, 10, v5
    v_cndmask_b32 v62, v27, v62, vcc
    s_lshl_b32 s79, s4, 8
    s_add_u32 s79, s79, {WS_F}
    v_lshrrev_b32 v2, 1, v0
    v_lshlrev_b32 v2, 8, v2
    v_and_b32 v3, 1, v0
    v_lshl_add_u32 v63, v3, 4, v2
    v_cmp_gt_u32 vcc, 4, v0
    v_cndmask_b32 v63, v27, v63, vcc
    s_lshl_b32 s71, s5, 5
    s_add_u32 s71, s71, s72
    s_lshl_b32 s34, s2, 2
    s_add_u32 s34, s34, {WS_PG}
    v_writelane_b32 v27, s34, 0
    v_mov_b32 v3, s2
    v_mov_b32 v4, 1
    v_mov_b32 v5, {L_CNT+16}
    s_waitcnt lgkmcnt(0)
    s_mov_b64 s[44:45], s[32:33]
    """)
    for k in range(3):
        A(f"buffer_store_dwordx4 v[28:31], v58, s[44:47], s69 offen offset:{768*k} sc1")
    A("""
    buffer_store_dwordx4 v[28:31], v59, s[44:47], s70 offen sc1
    buffer_store_dwordx4 v[28:31], v60, s[44:47], s70 offen sc1
    buffer_store_dwordx4 v[28:31], v61, s[44:47], s77 offen sc1
    buffer_store_dwordx4 v[28:31], v61, s[44:47], s78 offen sc1
    buffer_store_dwordx4 v[28:31], v62, s[44:47], s79 offen sc1
    buffer_store_dwordx4 v[28:31], v63, s[44:47], s71 offen sc1
    """)
    if ADAPT is not None:
        A("buffer_store_dword v4, v27, s[44:47], 0 offen sc1")
    a.label("L_nores0", pad=False)
    A("""
    s_waitcnt lgkmcnt(0)
    s_add_u32 s36, s10, s68
    s_addc_u32 s37, s11, 0
    s_mov_b64 s[44:45], s[32:33]
    s_mov_b64 s[48:49], s[8:9]
    """)
    for j in range(PRE):
        emit_load(j)
    A("""
    s_mov_b64 s[52:53], s[16:17]
    s_mov_b32 s54, 7864320
    s_mov_b32 s55, 0x20000
    """)
    srd_rest()
    A("s_barrier")
    stamp_at(3)
    for j in range(PRE, W):
        emit_load(j)
    A("""
    s_cmp_eq_u32 s3, 0
    s_cbranch_scc0 L_pre
    """)
    A(f"""
    v_mov_b32 v2, 0
    v_lshlrev_b32 v3, 4, v0
    s_lshl_b32 s35, s2, 7
    s_add_u32 s35, s35, {WS_FL}
    """)
    spin("L_npoll")
    A(f"""
    global_load_dwordx2 v[28:29], v2, s[30:31] sc1
    s_waitcnt vmcnt(0)
    v_min_u32 v30, v28, v29
    v_cmp_eq_u32 vcc, 0, v30
    s_cbranch_vccnz L_npoll
    v_mov_b32 v30, v28
    v_mov_b32 v31, v29
    s_mov_b64 exec, 0xff
    buffer_store_dwordx4 v[28:31], v3, s[44:47], s35 offen sc1
    s_mov_b64 exec, 1
    ds_write_b64 v5, v[28:29] offset:8
    ds_add_u32 v5, v4
    s_mov_b64 exec, -1
    """)
    stamp_at(1)
    A("s_branch L_pre")
    a.label("L_gate")
    if ADAPT is not None:
        ctrl_setup()
    spin("L_gwait")
    if ADAPT is not None:
        A("""
        s_cmp_eq_u32 s3, 5
        s_cbranch_scc0 L_gw2
        """)
        ctrl_step(8)
        a.label("L_gw2", pad=False)
    A(f"""
    s_sleep 2
    ds_read_b32 v4, v57 offset:{L_CNT+32}
    s_waitcnt lgkmcnt(0)
    v_readfirstlane_b32 s34, v4
    s_cmp_eq_u32 s34, 2
    s_cbranch_scc0 L_gwait
    s_mov_b64 vcc, 0
    """)
    for j in range(W):
        emit_load(j)
    a.label("L_pre", pad=False)
    for j in range(W, 3 * D):
        checkpoint(j)
        win_wait(j)
        emit_load(j)
    A("""
    s_cmp_eq_u32 s6, 0
    s_cbranch_scc0 L_main
    """)
    if ts: A("s_memrealtime s[88:89]")
    A("""
    s_waitcnt lgkmcnt(0)
    s_barrier
    """)
    a.label("L_main")
    stamp_at(4)
    A(f"""
    v_and_b32 v2, 7, v0
    v_lshlrev_b32 v2, 4, v2
    s_mul_i32 s34, s6, 384
    v_add_u32 v2, s34, v2
    ds_read_b128 v[4:7], v2 offset:{L_Q}
    ds_read_b128 v[8:11], v2 offset:{L_Q+128}
    ds_read_b128 v[12:15], v2 offset:{L_Q+256}
    s_mov_b32 s8, 0xaaaaaaaa
    s_mov_b32 s9, 0xaaaaaaaa
    s_mov_b32 s10, 0xcccccccc
    s_mov_b32 s11, 0xcccccccc
    s_mov_b32 s12, 0xff00ff00
    s_mov_b32 s13, 0xff00ff00
    v_and_b32 v3, 31, v0
    v_lshl_add_u32 v59, v3, 3, s72
    s_waitcnt lgkmcnt(0)
    """)
    Q = list(range(3 * D - WF(3*D-1), 3 * D))
    NL = 192
    issued = 3 * D
    def ensure_landed(tag):
        if tag in Q:
            idx = Q.index(tag)
            after = len(Q) - 1 - idx
            A(f"s_waitcnt vmcnt({after})")
            del Q[:idx + 1]
    def compute(j, grp=False):
        ten, g, t = j // 96, (j % 96) // 3, j % 3
        r = lreg(j)
        if ten == 0:
            P = 16 + g % 8
            ACC = [P, 28, 29]
            if grp:
                for tt in range(3):
                    A(f"v_mov_b32 v{ACC[tt]}, 0")
                for k in range(4):
                    for tt in range(3):
                        A(f"v_dot2c_f32_bf16 v{ACC[tt]}, v{lreg(j-2+tt)+k}, v{4+4*tt+k}")
                A(f"v_add_f32 v28, v28, v29")
                A(f"v_add_f32 v{P}, v{P}, v28")
            else:
                if t == 0:
                    A(f"v_mov_b32 v{P}, 0")
                    A(f"v_mov_b32 v28, 0")
                ensure_landed(j)
                A(f"v_dot2c_f32_bf16 v{P}, v{r}, v{4+4*t}")
                A(f"v_dot2c_f32_bf16 v28, v{r+1}, v{5+4*t}")
                A(f"v_dot2c_f32_bf16 v{P}, v{r+2}, v{6+4*t}")
                A(f"v_dot2c_f32_bf16 v28, v{r+3}, v{7+4*t}")
                if t == 2:
                    A(f"v_add_f32 v{P}, v{P}, v28")
            if t == 2 and g % 8 == 7:
                S = 24 + g // 8
                for q in range(4):
                    A(f"v_add_f32_dpp v{16+q}, v{16+q}, v{16+q} row_shl:4 row_mask:0xf bank_mask:0x5")
                for q in range(4):
                    A(f"v_add_f32_dpp v{16+q}, v{20+q}, v{20+q} row_shr:4 row_mask:0xf bank_mask:0xa")
                for q in range(4):
                    A(f"v_add_f32_dpp v{16+q}, v{16+q}, v{16+q} quad_perm:[2,3,0,1] row_mask:0xf bank_mask:0xf")
                A("v_cndmask_b32 v16, v16, v18, s[10:11]")
                A("v_cndmask_b32 v17, v17, v19, s[10:11]")
                A("v_add_f32_dpp v16, v16, v16 quad_perm:[1,0,3,2] row_mask:0xf bank_mask:0xf")
                A("v_add_f32_dpp v17, v17, v17 quad_perm:[1,0,3,2] row_mask:0xf bank_mask:0xf")
                A(f"v_cndmask_b32 v{S}, v16, v17, s[8:9]")
        else:
            k8, i = g // 8, g % 8
            pl, ph = (28, 29) if g % 2 == 0 else (30, 31)
            if t == 0:
                obcast(pl, 24 + k8, i)
                A(f"v_lshlrev_b32 v{ph}, 16, v{pl}")
            ensure_landed(j)
            for k in range(4):
                A(f"v_dot2c_f32_bf16 v{32+8*t+2*k}, v{r+k}, v{pl}")
                A(f"v_dot2c_f32_bf16 v{33+8*t+2*k}, v{r+k}, v{ph}")
    def mid_parts():
        def p0():
            stamp_at(5)
            for s0 in (24, 26):
                A(f"""
                v_cvt_pk_bf16_f32 v2, v{s0}, v{s0+1}
                v_lshlrev_b32 v{s0}, 16, v2
                v_and_b32 v{s0+1}, 0xffff0000, v2
                v_mul_f32 v{s0}, {hex(SCALE)}, v{s0}
                v_mul_f32 v{s0+1}, {hex(SCALE)}, v{s0+1}
                v_cvt_pk_bf16_f32 v2, v{s0}, v{s0+1}
                v_lshlrev_b32 v{s0}, 16, v2
                v_and_b32 v{s0+1}, 0xffff0000, v2
                """)
            A("v_max3_f32 v62, v24, v25, v26")
            A("v_max_f32 v62, v62, v27")
        def p1():
            red64(62, 2, "v_max_f32")
        def p2():
            for s0 in range(24, 28):
                A(f"v_sub_f32 v{s0}, v{s0}, v62")
            for s0 in range(24, 28):
                A(f"v_mul_f32 v{s0}, {hex(LOG2E)}, v{s0}")
            for s0 in range(24, 28):
                A(f"v_exp_f32 v{s0}, v{s0}")
            A("v_add_f32 v63, v24, v25")
            A("v_add_f32 v2, v26, v27")
            A("v_add_f32 v63, v63, v2")
            for s0 in range(24, 28):
                A(f"v_cvt_pk_bf16_f32 v{s0}, v{s0}, 0")
            for k in range(24):
                A(f"v_mov_b32 v{32+k}, 0")
        def p3():
            red64(63, 2)
            A("buffer_store_dwordx2 v[62:63], v56, s[44:47], 0 offen sc1")
            Q.append("mls")
        def p4():
            A(f"""
            s_lshl_b32 s34, s3, 10
            v_lshl_add_u32 v4, v0, 4, s34
            s_lshl_b32 s35, s6, 2
            v_mov_b32 v5, s35
            s_lshl_b32 s34, s6, 12
            v_lshl_add_u32 v6, v0, 4, s34
            v_lshlrev_b32 v7, 2, v0
            s_mul_i32 s14, s4, 12288
            s_mul_i32 s35, s6, 6144
            s_add_u32 s14, s14, s35
            s_lshl_b32 s35, s5, 8
            s_add_u32 s14, s14, s35
            s_add_u32 s14, s14, {WS_OP}
            s_add_u32 s15, s14, 4096
            """)
        return [p0, p1, p2, p3, p4]
    def ml_calc():
        ensure_landed("ml")
        A("s_branch L_mlcalc")
        spin("L_mlretry")
        A("""
        s_sleep 8
        buffer_load_dwordx2 v[8:9], v59, s[44:47], 0 offen sc1
        s_waitcnt vmcnt(0)
        """)
        a.label("L_mlcalc")
        A("""
        v_max_u32 v2, v8, v9
        v_cmp_eq_u32 vcc, -1, v2
        s_cbranch_vccnz L_mlretry
        v_mov_b32 v3, v8
        """)
        red32(3, 2, "v_max_f32")
        A(f"""
        v_sub_f32 v8, v8, v3
        v_sub_f32 v62, v62, v3
        v_mul_f32 v8, {hex(LOG2E)}, v8
        v_mul_f32 v62, {hex(LOG2E)}, v62
        v_exp_f32 v8, v8
        v_exp_f32 v62, v62
        v_mul_f32 v8, v8, v9
        """)
        red32(8, 2)
        A("""
        v_rcp_f32 v8, v8
        v_mul_f32 v62, v62, v8
        """)
    work = []
    for j in range(96): work.append(("c", j))
    for fn in mid_parts(): work.append(("f", fn))
    for j in range(96, 192): work.append(("c", j))
    wi = 0
    done_c = 0
    while wi < len(work):
        if issued < NL and issued - 3 * D < done_c:
            checkpoint(issued)
            Wj = win_wait(issued)
            if len(Q) > Wj - 1:
                del Q[:len(Q) - (Wj - 1)]
            if issued == NL - 12:
                A("buffer_load_dwordx2 v[8:9], v59, s[44:47], 0 offen sc1")
                Q.append("ml")
            emit_load(issued)
            Q.append(issued)
            issued += 1
            if issued == NL - GATE_EARLY:
                A("s_mov_b64 exec, 1")
                A(f"ds_add_u32 v57, v58 offset:{L_CNT+32}")
                A("s_mov_b64 exec, -1")
            if issued == NL:
                ml_calc()
        n = 0
        while wi < len(work) and n < CATCH:
            kind, v = work[wi]
            if kind == "f":
                if n > 0: break
                v(); wi += 1; n = CATCH
                break
            if v in Q and issued < NL and issued - 3 * D < done_c:
                break
            if v < 96 and v % 3 == 0 and n == 0 and CATCH >= 3 and (v + 2) not in Q and v + 2 < issued:
                compute(v + 2, grp=True); wi += 3; done_c += 3; n += 3
                continue
            compute(v); wi += 1; done_c += 1
            n += (1 if v < 96 else 2)
    stamp_at(6)
    for k in range(12):
        A(f"v_permlane32_swap_b32 v{32+k}, v{44+k}")
    for k in range(12):
        A(f"v_add_f32 v{32+k}, v{32+k}, v{44+k}")
    for k in range(6):
        A(f"v_permlane16_swap_b32 v{32+k}, v{38+k}")
    for k in range(6):
        A(f"v_add_f32 v{32+k}, v{32+k}, v{38+k}")
    for k in range(3):
        A(f"v_add_f32_dpp v{32+k}, v{32+k}, v{32+k} row_ror:8 row_mask:0xf bank_mask:0x3")
    for k in range(3):
        A(f"v_add_f32_dpp v{32+k}, v{35+k}, v{35+k} row_ror:8 row_mask:0xf bank_mask:0xc")
    for k in range(3):
        A(f"v_mul_f32 v{32+k}, v{32+k}, v62")
    A(f"""
    ds_write_b96 v4, v[32:34] offset:{L_O}
    s_mov_b64 exec, 1
    ds_add_rtn_u32 v2, v5, v58 offset:{L_CNT}
    s_mov_b64 exec, -1
    ds_read_b96 v[32:34], v6 offset:{L_O}
    ds_read_b96 v[36:38], v6 offset:{L_O+1024}
    ds_read_b96 v[40:42], v6 offset:{L_O+2048}
    ds_read_b96 v[44:46], v6 offset:{L_O+3072}
    s_waitcnt lgkmcnt(4)
    v_readfirstlane_b32 s35, v2
    s_cmp_eq_u32 s35, 3
    s_cbranch_scc0 L_notlast
    s_waitcnt lgkmcnt(2)
    v_add_f32 v32, v32, v36
    v_add_f32 v33, v33, v37
    v_add_f32 v34, v34, v38
    s_waitcnt lgkmcnt(0)
    v_add_f32 v40, v40, v44
    v_add_f32 v41, v41, v45
    v_add_f32 v42, v42, v46
    v_add_f32 v32, v32, v40
    buffer_store_dword v32, v7, s[44:47], s14 offen sc1
    v_add_f32 v33, v33, v41
    buffer_store_dword v33, v7, s[44:47], s14 offen offset:2048 sc1
    v_add_f32 v34, v34, v42
    buffer_store_dword v34, v7, s[44:47], s15 offen sc1
    """)
    a.label("L_notlast")
    A("s_waitcnt lgkmcnt(0)")
    A("s_cmp_eq_u32 s6, 1")
    A("s_cbranch_scc1 L_fin")
    WR, WP, RR = 64, 96, 128
    A(f"""
    v_mov_b32 v8, v7
    s_lshl_b32 s34, s5, 2
    s_add_u32 s34, s34, s7
    s_mul_i32 s18, s34, 43
    s_lshr_b32 s18, s18, 7
    s_mul_i32 s19, s18, 3
    s_sub_u32 s19, s34, s19
    s_cmp_lt_u32 s34, 30
    s_cselect_b32 s20, 1, 0
    s_cmp_lt_u32 s2, 80
    s_cselect_b32 s21, 1, 0
    s_cmp_eq_u32 s7, 3
    s_cselect_b32 s21, s21, 0
    s_or_b32 s34, s20, s21
    s_cmp_eq_u32 s34, 0
    s_cbranch_scc1 L_fin
    v_lshrrev_b32 v2, 3, v0
    v_mul_u32_u24 v3, 3, v2
    v_add_u32 v3, s19, v3
    v_lshrrev_b32 v4, 3, v3
    v_and_b32 v3, 7, v3
    v_lshl_add_u32 v3, v4, 6, v3
    v_mul_u32_u24 v3, 1280, v3
    v_and_b32 v5, 7, v0
    v_lshl_add_u32 v3, v5, 4, v3
    v_lshlrev_b32 v9, 2, v2
    v_lshl_add_u32 v9, v5, 5, v9
    s_mul_i32 s34, s4, 245760
    s_lshl_b32 s35, s18, 7
    s_add_u32 s34, s34, s35
    s_mul_i32 s16, s4, 12288
    s_lshl_b32 s35, s19, 11
    s_add_u32 s16, s16, s35
    s_add_u32 s16, s16, {WS_OP}
    s_mul_i32 s22, s18, 24576
    s_mul_i32 s35, s4, 768
    s_add_u32 s22, s22, s35
    s_lshl_b32 s35, s19, 8
    s_add_u32 s22, s22, s35
    s_add_u32 s22, s22, {WS_Y}
    s_mov_b32 s17, 0
    s_cmp_eq_u32 s20, 0
    s_cbranch_scc1 L_rinit
    """)
    for i in range(8):
        if i >= 1:
            A("s_waitcnt vmcnt(0)")
        A(f"buffer_load_dwordx4 v[{WR+4*i}:{WR+4*i+3}], v3, s[52:55], s34 offen nt")
        A("s_add_u32 s34, s34, 10240")
    A("s_waitcnt vmcnt(0)")
    for i2 in range(4):
        r0, r1 = WR + 8 * i2, WR + 8 * i2 + 4
        for k in range(4):
            A(f"v_perm_b32 v{WP+8*i2+2*k}, v{r1+k}, v{r0+k}, s82")
            A(f"v_perm_b32 v{WP+8*i2+2*k+1}, v{r1+k}, v{r0+k}, s83")
    a.label("L_rinit")
    if ADAPT is not None:
        ctrl_setup()
    A("""
    s_cmp_eq_u32 s21, 0
    s_cbranch_scc1 L_oloop
    """)
    A(f"""
    s_cmp_ge_u32 s2, 40
    s_cselect_b32 s23, 1, 0
    s_mul_i32 s24, s23, 40
    s_sub_u32 s24, s2, s24
    s_lshl_b32 s35, s23, 4
    v_mov_b32 v2, s35
    ds_read_b96 v[28:30], v2 offset:{L_LN}
    s_mul_i32 s34, s23, 1280
    v_mul_u32_u24 v2, 20, v0
    buffer_load_dwordx4 v[16:19], v2, s[48:51], s34 offen
    buffer_load_dword v20, v2, s[48:51], s34 offen offset:16
    buffer_load_dwordx4 v[22:25], v2, s[60:63], 0 offen
    buffer_load_dword v26, v2, s[60:63], 0 offen offset:16
    v_and_b32 v3, 3, v0
    v_lshlrev_b32 v3, 2, v3
    v_lshrrev_b32 v4, 4, v0
    v_add_u32 v3, v3, v4
    s_lshl_b32 s35, s24, 4
    v_add_u32 v3, s35, v3
    v_lshl_add_u32 v10, v3, 1, s34
    buffer_load_ushort v11, v10, s[48:51], 0 offen
    v_mov_b32 v2, {L_CNT+24}
    ds_read_b64 v[6:7], v2
    v_lshlrev_b32 v2, 7, v0
    s_mov_b32 s34, {WS_FL}
    s_mov_b32 s35, {WS_FL+8192}
    s_mov_b32 s25, {WS_FL+16384}
    s_mov_b32 s26, {WS_FL+24576}
    """)
    spin("L_fpoll")
    A("""
    buffer_load_dwordx2 v[32:33], v2, s[44:47], s34 offen sc1
    buffer_load_dwordx2 v[34:35], v2, s[44:47], s35 offen sc1
    buffer_load_dwordx2 v[36:37], v2, s[44:47], s25 offen sc1
    buffer_load_dwordx2 v[38:39], v2, s[44:47], s26 offen sc1
    s_waitcnt vmcnt(0) lgkmcnt(0)
    v_cmp_ne_u64 vcc, v[32:33], v[6:7]
    v_cmp_ne_u64 s[68:69], v[34:35], v[6:7]
    s_or_b64 vcc, vcc, s[68:69]
    v_cmp_ne_u64 s[68:69], v[36:37], v[6:7]
    s_or_b64 vcc, vcc, s[68:69]
    v_cmp_ne_u64 s[68:69], v[38:39], v[6:7]
    s_or_b64 vcc, vcc, s[68:69]
    s_cbranch_scc1 L_fpoll
    v_mov_b32 v13, 0
    """)
    def xnorm(d, t):
        A(f"v_sub_f32 v{d}, v{d}, v30")
        rbf(d, d)
        A(f"""
        v_mul_f32 v{t}, v{d}, v29
        v_fma_f32 v{d}, -v{t}, v28, v{d}
        v_fma_f32 v{d}, v{d}, v29, v{t}
        """)
    for k in range(5):
        A(f"v_lshlrev_b32 v2, 16, v{16+k}")
        A(f"v_and_b32 v3, 0xffff0000, v{16+k}")
        xnorm(2, 4)
        xnorm(3, 4)
        A("v_cvt_pk_bf16_f32 v2, v2, v3")
        A(f"v_dot2c_f32_bf16 v13, v2, v{22+k}")
    red64(13, 2)
    rbf(13, 13)
    A("""
    v_mul_f32 v13, 0xbfb8aa3b, v13
    v_exp_f32 v13, v13
    v_add_f32 v13, 1.0, v13
    v_rcp_f32 v13, v13
    """)
    rbf(13, 13)
    A("v_lshlrev_b32 v11, 16, v11")
    A("v_mov_b32 v12, v11")
    xnorm(12, 4)
    rbf(12, 12)
    A(f"""
    v_lshrrev_b32 v2, 2, v0
    v_lshlrev_b32 v2, 8, v2
    v_and_b32 v3, 3, v0
    v_lshl_add_u32 v14, v3, 4, v2
    s_and_b32 s34, s24, 3
    s_lshl_b32 s34, s34, 6
    v_add_u32 v14, s34, v14
    s_lshr_b32 s34, s24, 2
    s_mul_i32 s35, s23, 10
    s_add_u32 s34, s34, s35
    s_lshl_b32 s25, s34, 13
    s_add_u32 s25, s25, {WS_F}
    s_add_u32 s26, s25, 4096
    v_mov_b32 v15, {OOB}
    s_mul_i32 s71, s34, 24576
    s_add_u32 s71, s71, {WS_Y}
    s_add_u32 s27, s71, 8192
    s_add_u32 s68, s71, 12288
    s_add_u32 s69, s71, 16384
    s_add_u32 s70, s71, 20480
    """)
    a.label("L_oloop")
    A(f"""
    s_lshl_b32 s34, s17, 2
    v_mov_b32 v31, s34
    """)
    spin("L_cwait")
    A(f"""
    ds_read_b32 v4, v31 offset:{L_CNT}
    s_waitcnt lgkmcnt(0)
    v_readfirstlane_b32 s34, v4
    s_cmp_eq_u32 s34, 4
    s_cbranch_scc1 L_go
    """)
    if ADAPT is not None:
        A("""
        s_or_b32 s34, s34, s3
        s_cmp_eq_u32 s34, 0
        s_cbranch_scc0 L_cw2
        """)
        ctrl_step(52)
        a.label("L_cw2", pad=False)
    A("""
    s_sleep 2
    s_branch L_cwait
    """)
    a.label("L_go", pad=False)
    A("""
    s_cmp_eq_u32 s20, 0
    s_cbranch_scc1 L_rpoll
    """)
    for xp in range(8):
        A(f"buffer_load_dword v{16+xp}, v8, s[44:47], s16 offen offset:{256*xp} sc1")
    A("s_branch L_ochk")
    spin("L_opoll")
    for xp in range(8):
        A(f"v_cmp_eq_u32 vcc, -1, v{16+xp}")
        A(f"s_cbranch_vccz L_osk{xp}")
        A(f"buffer_load_dword v{16+xp}, v8, s[44:47], s16 offen offset:{256*xp} sc1")
        a.label(f"L_osk{xp}", pad=False)
    a.label("L_ochk", pad=False)
    for k in range(8):
        A(f"v_mov_b32 v{32+k}, 0")
    A("""
    s_waitcnt vmcnt(0)
    v_max3_u32 v2, v16, v17, v18
    v_max3_u32 v3, v19, v20, v21
    v_add_f32 v24, v16, v17
    v_add_f32 v25, v18, v19
    v_max3_u32 v2, v2, v22, v23
    v_add_f32 v26, v20, v21
    v_add_f32 v27, v22, v23
    v_max_u32 v2, v2, v3
    v_add_f32 v24, v24, v25
    v_cmp_eq_u32 vcc, -1, v2
    v_add_f32 v26, v26, v27
    s_cbranch_vccnz L_opoll
    v_add_f32 v16, v24, v26
    v_mov_b32_dpp v17, v16 quad_perm:[1,0,3,2] row_mask:0xf bank_mask:0xf
    v_cvt_pk_bf16_f32 v16, v16, v17
    """)
    for i2 in range(4):
        A(f"v_mov_b32_dpp v{20+i2}, v16 row_newbcast:{2*i2} row_mask:0xf bank_mask:0x3")
    for i2 in range(4):
        A(f"v_mov_b32_dpp v{20+i2}, v16 row_newbcast:{8+2*i2} row_mask:0xf bank_mask:0xc")
    for i2 in range(4):
        for c in range(8):
            A(f"v_dot2c_f32_bf16 v{32+c}, v{20+i2}, v{WP+8*i2+c}")
    oct_red8(32)
    A("buffer_store_dword v32, v9, s[44:47], s22 offen sc1")
    stamp_at(7)
    A("""
    s_cmp_eq_u32 s21, 0
    s_cbranch_scc1 L_onext
    """)
    spin("L_rpoll")
    SO = [25, 26, 27, 68, 69, 70]
    for k in range(6):
        A(f"buffer_load_dwordx4 v[{RR+4*k}:{RR+4*k+3}], v{14 if k < 2 else 15}, s[44:47], s{SO[k]} offen sc1")
    A("s_waitcnt vmcnt(0)")
    A(f"v_max3_u32 v2, v{RR}, v{RR+1}, v{RR+2}")
    A(f"v_max3_u32 v3, v{RR+3}, v{RR+4}, v{RR+5}")
    for k in range(6, 24, 4):
        A(f"v_max3_u32 v2, v2, v{RR+k}, v{RR+k+1}")
        if k + 3 < 24:
            A(f"v_max3_u32 v3, v3, v{RR+k+2}, v{RR+k+3}")
    A("""
    v_max_u32 v2, v2, v3
    v_cmp_eq_u32 vcc, -1, v2
    """)
    for k in range(12):
        A(f"v_add_f32 v{RR+k}, v{RR+k}, v{RR+12+k}")
    A("s_cbranch_vccnz L_rpoll")
    for k in range(4):
        A(f"v_add_f32 v{RR+k}, v{RR+k}, v{RR+4+k}")
    for k in range(4):
        A(f"v_add_f32 v{RR+k}, v{RR+k}, v{RR+8+k}")
    A(f"""
    v_permlane32_swap_b32 v{RR}, v{RR+2}
    v_permlane32_swap_b32 v{RR+1}, v{RR+3}
    v_add_f32 v{RR}, v{RR}, v{RR+2}
    v_add_f32 v{RR+1}, v{RR+1}, v{RR+3}
    v_permlane16_swap_b32 v{RR}, v{RR+1}
    v_add_f32 v16, v{RR}, v{RR+1}
    v_add_f32_dpp v16, v16, v16 row_ror:8 row_mask:0xf bank_mask:0xf
    v_add_f32_dpp v16, v16, v16 row_ror:4 row_mask:0xf bank_mask:0xf
    """)
    rbf(16, 16)
    A("v_mul_f32 v16, v16, v13")
    rbf(16, 16)
    A("""
    v_add_f32 v16, v12, v16
    v_cvt_pk_bf16_f32 v16, v16, v16
    s_cmp_eq_u32 s17, 0
    s_cbranch_scc1 L_gcalc
    s_mov_b64 s[64:65], s[28:29]
    s_movk_i32 s66, 2560
    s_mov_b32 s67, 0x20000
    buffer_store_short v16, v10, s[64:67], 0 offen
    """)
    if DBGT:
        A(f"""
        v_mov_b32 v2, {L_CNT+24}
        ds_read_b32 v3, v2
        s_waitcnt lgkmcnt(0)
        v_readfirstlane_b32 s70, v3
        """)
        spin("L_dly")
        A(f"""
        s_memrealtime s[68:69]
        s_waitcnt lgkmcnt(0)
        s_sub_u32 s68, s68, s70
        s_cmp_lt_u32 s68, {DBGT}
        s_cbranch_scc1 L_dly
        """)
    A("s_branch L_fin")
    a.label("L_gcalc")
    A("""
    v_and_b32 v16, 0xffff0000, v16
    v_mul_f32 v17, 0xbfb8aa3b, v16
    v_exp_f32 v17, v17
    v_add_f32 v17, 1.0, v17
    v_rcp_f32 v17, v17
    v_mul_f32 v13, v16, v17
    """)
    rbf(13, 13)
    A("""
    v_mov_b32 v12, v11
    s_mov_b32 s25, s71
    s_add_u32 s26, s71, 4096
    v_mov_b32 v15, v14
    """)
    a.label("L_onext")
    A("""
    s_add_u32 s16, s16, 6144
    s_add_u32 s22, s22, 245760
    s_add_u32 s17, s17, 1
    s_cmp_lt_u32 s17, 2
    s_cbranch_scc1 L_oloop
    """)
    a.label("L_fin")
    if ts:
        stamp_at(8)
        A("""
        s_waitcnt lgkmcnt(0)
        s_add_u32 s32, s32, 0x4000000
        s_addc_u32 s33, s33, 0
        s_lshl_b32 s34, s2, 3
        s_add_u32 s34, s34, s3
        s_lshl_b32 s34, s34, 7
        v_lshlrev_b32 v1, 2, v0
        v_add_u32 v1, s34, v1
        """)
        for k in range(18):
            A(f"v_writelane_b32 v2, s{84+k}, {k}")
        A("""
        s_mov_b64 exec, 0x3ffff
        global_store_dword v1, v2, s[32:33] sc1
        """)
    a.label("L_end", pad=False)
    A("s_endpgm")
    a.raw('.section .rodata,"a"')
    a.raw(".p2align 6")
    a.raw(f".amdhsa_kernel {KNAME}")
    a.raw("  .amdhsa_next_free_vgpr 256")
    a.raw("  .amdhsa_next_free_sgpr 102")
    a.raw("  .amdhsa_accum_offset 256")
    a.raw("  .amdhsa_group_segment_fixed_size 0")
    a.raw("  .amdhsa_kernarg_size 104")
    a.raw("  .amdhsa_user_sgpr_count 2")
    a.raw("  .amdhsa_user_sgpr_kernarg_segment_ptr 1")
    a.raw("  .amdhsa_system_sgpr_workgroup_id_x 1")
    a.raw("  .amdhsa_float_denorm_mode_32 3")
    a.raw(".end_amdhsa_kernel")
    return a.text().replace("CPFMAX", "19").replace("NREAD", "s_nop 0" if EARLYN else "s_memrealtime s[80:81]")

def wf(w1, w2, w3, w4, e2=84, e3=170):
    return lambda j: w1 if j < 48 else (w2 if j < e2 else (w3 if j < e3 else w4))


if __name__ == "__main__":
    open("h5_a.s","w").write(gen(WF=wf(5,5,5,8), TSL=8, DBGT=8000, EARLYN=True))
    open("h5_b.s","w").write(gen(WF=wf(5,5,5,8), TSL=8, DBGT=8000, EARLYN=False))
```
